```python
import torch

def _softmax(x, axis=-1):
    return torch.softmax(x, dim=axis)
def _gelu(x):
    return torch.nn.functional.gelu(x, approximate="tanh")
def _silu(x):
    return torch.nn.functional.silu(x)
def _sigmoid(x):
    return torch.sigmoid(x)
def _layernorm(x, axis=-1, eps=1e-5):
    m = x.mean(dim=axis, keepdim=True)
    v = x.var(dim=axis, keepdim=True, unbiased=False)
    return (x - m) / torch.sqrt(v + eps)
def _scatter_add(tgt, idx, src, axis=0):
    return tgt.clone().index_add_(axis, idx, src)
def _segment_sum(src, seg, n):
    out = torch.zeros((n,) + src.shape[1:], dtype=src.dtype)
    return out.index_add_(0, seg, src)
def _pad(x, pw):
    flat = tuple(v for pair in reversed(pw) for v in pair)
    return torch.nn.functional.pad(x, flat)

kernel_name = 'sequential_preLN__softmax_full_mha__glu_gated_swiglu__prompt'

def setup_inputs():

    _w = (lambda a: (lambda t: t.to(torch.bfloat16) if t.is_floating_point() else t)(torch.as_tensor(a)))
    def _A_setup():
        B, S, D = 1, 2048, 640
        return {
            "x": _w((lambda *s: torch.randn(*s, dtype=torch.bfloat16) * 0.05)(B, S, D)),
            "wqkv": _w((lambda *s: torch.randn(*s, dtype=torch.bfloat16) * 0.05)(D, 3 * D)),
            "wo": _w((lambda *s: torch.randn(*s, dtype=torch.bfloat16) * 0.05)(D, D)),
        }
    _A_in = _A_setup()

    def _B_setup():
        B, S, D, F = 1, 2048, 640, 1728
        return {
            "x": _w((lambda *s: torch.randn(*s, dtype=torch.bfloat16) * 0.05)(B, S, D)),
            "w1": _w((lambda *s: torch.randn(*s, dtype=torch.bfloat16) * 0.4)(D, F) * (2.0 / D) ** 0.5),
            "w3": _w((lambda *s: torch.randn(*s, dtype=torch.bfloat16) * 0.4)(D, F) * (2.0 / D) ** 0.5),
            "w2": _w((lambda *s: torch.randn(*s, dtype=torch.bfloat16) * 0.4)(F, D) * (2.0 / F) ** 0.5),
        }
    _B_in = _B_setup()

    return {
        "A_x": _A_in["x"],
        "A_wqkv": _A_in["wqkv"],
        "A_wo": _A_in["wo"],
        "B_x": _B_in["x"],
        "B_w1": _B_in["w1"],
        "B_w3": _B_in["w3"],
        "B_w2": _B_in["w2"],
    }

def reference(A_x, A_wqkv, A_wo, B_x, B_w1, B_w3, B_w2):
    def _A_ref(x, wqkv, wo):
        B, S, D = x.shape
        H = 32; Dh = D // H
        qkv = (lambda x, *d: x.permute(*d))((x @ wqkv).reshape(B, S, 3, H, Dh), 2, 0, 3, 1, 4)
        q, k, v = qkv[0], qkv[1], qkv[2]
        scale = Dh ** -0.5
        scores = torch.einsum("bhqd,bhkd->bhqk", q, k) * scale
        p = _softmax(scores, axis=-1)
        o = torch.einsum("bhqk,bhkd->bhqd", p, v)
        return (lambda x, *d: x.permute(*d))(o, 0, 2, 1, 3).reshape(B, S, D) @ wo

    def _B_ref(x, w1, w3, w2):
        gate = torch.einsum("bsd,df->bsf", x, w1)
        up = torch.einsum("bsd,df->bsf", x, w3)
        h = _silu(gate) * up
        out = torch.einsum("bsf,fd->bsd", h, w2)
        return out

    x = A_x
    h = x + _A_ref(_layernorm(x, axis=-1), A_wqkv, A_wo)
    h2 = h + _B_ref(_layernorm(h, axis=-1), B_w1, B_w3, B_w2)
    return h2
```

```python
import struct

def f32bits(x):
    return struct.unpack("<I", struct.pack("<f", x))[0]

def v(i, n=1):
    return f"v{i}" if n == 1 else f"v[{i}:{i+n-1}]"
def s(i, n=1):
    return f"s{i}" if n == 1 else f"s[{i}:{i+n-1}]"
def a(i, n=1):
    return f"a{i}" if n == 1 else f"a[{i}:{i+n-1}]"

class Regs:
    def __init__(self, start, limit):
        self.cur = start; self.limit = limit; self.hi = start
    def alloc(self, n=1, align=1):
        if n >= 2 and align == 1: align = 2
        self.cur = (self.cur + align - 1) // align * align
        r = self.cur; self.cur += n
        assert self.cur <= self.limit, f"out of regs {self.cur} > {self.limit}"
        self.hi = max(self.hi, self.cur)
        return r
    def mark(self): return self.cur
    def reset(self, m): self.cur = m

class Asm:
    def __init__(self):
        self.lines = []
        self.uid = 0
    def __call__(self, txt):
        for l in txt.split("\n"):
            l = l.strip()
            if l: self.lines.append("  " + l)
    def label(self, name):
        self.lines.append(f"{name}:")
    def newlabel(self, base):
        self.uid += 1
        return f"{base}_{self.uid}"
    def comment(self, t):
        self.lines.append(f"  ; {t}")
    def raw(self, t):
        self.lines.append(t)
    def nop(self, n):
        while n > 0:
            k = min(n, 16)
            self(f"s_nop {k-1}")
            n -= k
    def text(self):
        return "\n".join(self.lines)

def kernel_header(name):
    return f""".globl {name}
.p2align 8
.type {name},@function
{name}:"""

def kernel_desc(name, vgprs, sgprs=102, accum=None):
    if accum is None:
        accum = (vgprs + 3) // 4 * 4
    return f""".p2align 6
.amdhsa_kernel {name}
  .amdhsa_next_free_vgpr {vgprs}
  .amdhsa_next_free_sgpr {sgprs}
  .amdhsa_accum_offset {accum}
  .amdhsa_group_segment_fixed_size 0
  .amdhsa_kernarg_size 80
  .amdhsa_user_sgpr_count 2
  .amdhsa_user_sgpr_kernarg_segment_ptr 1
  .amdhsa_system_sgpr_workgroup_id_x 1
  .amdhsa_float_denorm_mode_32 3
.end_amdhsa_kernel"""
```

```python
from asmlib import *
KA_X, KA_WQKV, KA_WO, KA_BX, KA_W1, KA_W3, KA_W2, KA_OUT, KA_DBG, KA_WS = [8*i for i in range(10)]
T = 2048; D = 640; H = 32; DH = 20; F = 1728
WS_QM = 0x000000
WS_QR = 0x200000
WS_KM = 0x280000
WS_KR = 0x480000
WS_VT = 0x500000
WS_OM = 0x780000
WS_OR = 0x980000
WS_H  = 0xA00000
WS_G  = 0xC80000
WS_A2 = 0x1340000
WS_SIZE = 0x1400000
SZ_X = T*D*2; SZ_WQKV = D*3*D*2; SZ_WO = D*D*2; SZ_W1 = D*F*2; SZ_W2 = F*D*2; SZ_OUT = T*D*2
QSCALE = (DH ** -0.5) * 1.4426950408889634
EPS = 1e-5

def srd(A, sreg, ptr_sreg, size):
    A(f"s_mov_b32 {s(sreg)}, {s(ptr_sreg)}")
    A(f"s_and_b32 {s(sreg+1)}, {s(ptr_sreg+1)}, 0xffff")
    A(f"s_mov_b32 {s(sreg+2)}, {size:#x}")
    A(f"s_mov_b32 {s(sreg+3)}, 0x20000")

import os
STAMP = os.environ.get("STAMP", "0") == "1"
WS_STAMP = 0x1800000
class Stamper:
    def __init__(self, A, wsptr, base=60):
        self.A = A; self.n = 0; self.base = base; self.ws = wsptr
    def stamp(self):
        if not STAMP: return
        self.A(f"s_memtime {s(self.base+2*self.n,2)}")
        self.A("s_waitcnt lgkmcnt(0)")
        self.n += 1
    def finish(self, sWV, vtmp, koff=0):
        if not STAMP: return
        A = self.A
        self.stamp()
        Stamper.cnt = getattr(Stamper, "cnt", 0) + 1
        L = f"stamp_skip_k{koff}_{Stamper.cnt}"
        A("s_waitcnt lgkmcnt(0) vmcnt(0)")
        A(f"s_cmp_eq_u32 {s(sWV)}, 0")
        A(f"s_cbranch_scc0 {L}")
        A(f"s_lshl_b32 s58, s2, 6")
        A(f"s_add_u32 s58, s58, {WS_STAMP + koff*0x10000:#x}")
        A(f"s_add_u32 s58, {s(self.ws)}, s58")
        A(f"s_addc_u32 s59, {s(self.ws+1)}, 0")
        A(f"v_mov_b32 {v(vtmp+1)}, 0")
        for i in range(self.n):
            if i == 0:
                A(f"v_mov_b32 {v(vtmp)}, {s(self.base)}")
            else:
                A(f"s_sub_u32 {s(self.base+2*i)}, {s(self.base+2*i)}, {s(self.base)}")
                A(f"v_mov_b32 {v(vtmp)}, {s(self.base+2*i)}")
            A(f"global_store_dword {v(vtmp+1)}, {v(vtmp)}, s[58:59] offset:{4*i}")
            A("s_nop 1")
        A.label(L)
```

```python
from common import *
import os

def gen_p1(name="p1_qkv_kernel"):
    A = Asm()
    A.raw(kernel_header(name))
    END = f"{name}_END"
    sX, sW, sWS = 8, 12, 16
    sRB, sCG, sWV, sWR, sWC, sM, sXo, sWo = 20, 21, 22, 23, 28, 29, 30, 31
    sT0, sT1, sT2, sT3 = 32, 33, 34, 35
    ST = Stamper(A, 24)
    ST.stamp()
    A(f"s_cmp_ge_u32 s2, 256")
    A(f"s_cbranch_scc1 {END}")
    A(f"s_load_dwordx4 s[4:7], s[0:1], {KA_X}")
    A(f"s_load_dwordx2 s[24:25], s[0:1], {KA_WS}")
    A(f"s_and_b32 {s(sT0)}, s2, 7")
    A(f"s_lshr_b32 {s(sT1)}, s2, 3")
    A(f"s_lshr_b32 {s(sT2)}, {s(sT0)}, 2")
    A(f"s_lshl_b32 {s(sT2)}, {s(sT2)}, 3")
    A(f"s_and_b32 {s(sT3)}, {s(sT1)}, 7")
    A(f"s_add_u32 {s(sRB)}, {s(sT2)}, {s(sT3)}")
    A(f"s_and_b32 {s(sT2)}, {s(sT0)}, 3")
    A(f"s_lshl_b32 {s(sT2)}, {s(sT2)}, 2")
    A(f"s_lshr_b32 {s(sT3)}, {s(sT1)}, 3")
    A(f"s_add_u32 {s(sCG)}, {s(sT2)}, {s(sT3)}")
    A(f"s_cmp_ge_u32 {s(sCG)}, 15")
    A(f"s_cbranch_scc1 {END}")
    R = Regs(1, 128)
    vLane = R.alloc(); vLi = R.alloc(); vHb = R.alloc()
    vX0 = R.alloc(); vX1 = R.alloc(); vW0 = R.alloc(); vW1 = R.alloc()
    vXA = R.alloc(4, 1); vXB = R.alloc(4, 1); vWA = R.alloc(); vWB = R.alloc()
    vOne = R.alloc()
    vSt = R.alloc(4, 2)
    vCs = R.alloc()
    t = [R.alloc() for _ in range(8)]
    acc = [R.alloc(16, 4), R.alloc(16, 4)]
    Xf = [[R.alloc(4, 4), R.alloc(4, 4)] for _ in range(2)]
    Wf = [R.alloc(4, 4) for _ in range(2)]
    A(f"v_lshrrev_b32 {v(t[0])}, 6, v0")
    A(f"v_and_b32 {v(vLane)}, 63, v0")
    A(f"v_readfirstlane_b32 {s(sWV)}, {v(t[0])}")
    A(f"v_and_b32 {v(vLi)}, 31, {v(vLane)}")
    A(f"v_lshrrev_b32 {v(vHb)}, 5, {v(vLane)}")
    A(f"s_lshr_b32 {s(sWR)}, {s(sWV)}, 2")
    A(f"s_and_b32 {s(sWC)}, {s(sWV)}, 3")
    A(f"s_lshl_b32 {s(sM)}, {s(sWV)}, 11")
    A(f"s_lshl_b32 {s(sT0)}, {s(sRB)}, 7")
    A(f"s_lshl_b32 {s(sT1)}, {s(sWV)}, 4")
    A(f"s_add_u32 {s(sT0)}, {s(sT0)}, {s(sT1)}")
    A(f"v_lshrrev_b32 {v(t[0])}, 3, {v(vLane)}")
    A(f"v_add_u32 {v(t[0])}, {s(sT0)}, {v(t[0])}")
    A(f"v_mul_u32_u24 {v(t[0])}, 1280, {v(t[0])}")
    A(f"v_and_b32 {v(t[1])}, 7, {v(vLane)}")
    A(f"v_lshrrev_b32 {v(t[2])}, 4, {v(vLane)}")
    A(f"v_xor_b32 {v(t[1])}, {v(t[1])}, {v(t[2])}")
    A(f"v_lshl_add_u32 {v(vX0)}, {v(t[1])}, 4, {v(t[0])}")
    A(f"v_xor_b32 {v(t[1])}, 4, {v(t[1])}")
    A(f"v_lshl_add_u32 {v(vX1)}, {v(t[1])}, 4, {v(t[0])}")
    A(f"v_add_u32 {v(vX1)}, 10240, {v(vX1)}")
    A(f"s_lshl_b32 {s(sT1)}, {s(sWV)}, 3")
    A(f"v_add_u32 {v(t[0])}, {s(sT1)}, {v(t[2])}")
    A(f"v_mul_u32_u24 {v(t[0])}, 3840, {v(t[0])}")
    A(f"s_lshl_b32 {s(sT2)}, {s(sCG)}, 8")
    A(f"v_add_u32 {v(t[0])}, {s(sT2)}, {v(t[0])}")
    A(f"v_bfe_u32 {v(t[1])}, {v(vLane)}, 2, 2")
    A(f"v_xor_b32 {v(t[1])}, {v(t[1])}, {v(t[2])}")
    A(f"v_lshl_add_u32 {v(t[0])}, {v(t[1])}, 6, {v(t[0])}")
    A(f"v_and_b32 {v(t[1])}, 3, {v(vLane)}")
    A(f"v_lshl_add_u32 {v(vW0)}, {v(t[1])}, 4, {v(t[0])}")
    A(f"v_add_u32 {v(vW1)}, 15360, {v(vW0)}")
    A("s_waitcnt lgkmcnt(0)")
    srd(A, sX, 4, SZ_X); srd(A, sW, 6, SZ_WQKV); srd(A, sWS, 24, WS_SIZE)
    A(f"s_mov_b32 {s(sXo)}, 0")
    A(f"s_mov_b32 {s(sWo)}, 0")
    def dma(st):
        base = (st % 4) * 32768
        A(f"s_add_u32 m0, {s(sM)}, {base}")
        A("s_nop 0")
        A(f"buffer_load_dwordx4 {v(vX0)}, {s(sX,4)}, {s(sXo)} offen lds")
        A(f"s_add_u32 m0, {s(sM)}, {base+1024}")
        A("s_nop 0")
        A(f"buffer_load_dwordx4 {v(vX1)}, {s(sX,4)}, {s(sXo)} offen lds")
        A(f"s_add_u32 m0, {s(sM)}, {base+16384}")
        A(f"s_add_u32 {s(sXo)}, {s(sXo)}, 128")
        A(f"buffer_load_dwordx4 {v(vW0)}, {s(sW,4)}, {s(sWo)} offen lds")
        A(f"s_add_u32 m0, {s(sM)}, {base+16384+1024}")
        A("s_nop 0")
        A(f"buffer_load_dwordx4 {v(vW1)}, {s(sW,4)}, {s(sWo)} offen lds")
        A(f"s_add_u32 {s(sWo)}, {s(sWo)}, {64*3840}")
    ST.stamp()
    for st in range(3): dma(st)
    A(f"s_lshl_b32 {s(sT0)}, {s(sWR)}, 6")
    A(f"v_add_u32 {v(t[0])}, {s(sT0)}, {v(vLi)}")
    A(f"v_lshlrev_b32 {v(t[0])}, 7, {v(t[0])}")
    A(f"v_bfe_u32 {v(t[1])}, {v(vLi)}, 1, 3")
    A(f"v_xor_b32 {v(t[1])}, {v(t[1])}, {v(vHb)}")
    for ks in range(4):
        A(f"v_xor_b32 {v(t[2])}, {2*ks}, {v(t[1])}")
        A(f"v_lshl_add_u32 {v(vXA+ks)}, {v(t[2])}, 4, {v(t[0])}")
        A(f"v_add_u32 {v(vXB+ks)}, 0x10000, {v(vXA+ks)}")
    A(f"v_bfe_u32 {v(t[0])}, {v(vLane)}, 2, 2")
    A(f"v_lshl_add_u32 {v(t[1])}, {v(vHb)}, 3, {v(t[0])}")
    A(f"v_lshlrev_b32 {v(t[1])}, 8, {v(t[1])}")
    A(f"v_xor_b32 {v(t[0])}, {s(sWC)}, {v(t[0])}")
    A(f"v_lshl_add_u32 {v(t[1])}, {v(t[0])}, 6, {v(t[1])}")
    A(f"v_bfe_u32 {v(t[0])}, {v(vLane)}, 4, 1")
    A(f"v_lshl_add_u32 {v(t[1])}, {v(t[0])}, 5, {v(t[1])}")
    A(f"v_and_b32 {v(t[0])}, 3, {v(vLane)}")
    A(f"v_lshl_add_u32 {v(t[1])}, {v(t[0])}, 3, {v(t[1])}")
    A(f"v_add_u32 {v(vWA)}, 16384, {v(t[1])}")
    A(f"v_add_u32 {v(vWB)}, 0x10000, {v(vWA)}")
    A(f"v_mov_b32 {v(vOne)}, 0x3f803f80")
    for i in range(4): A(f"v_mov_b32 {v(vSt+i)}, 0")
    A(f"v_mov_b32 {v(vCs)}, 0")

    def reads(st, ks):
        slot = st % 4; b = ks % 2
        hiX = vXB if slot >= 2 else vXA; hiW = vWB if slot >= 2 else vWA
        off = (slot % 2) * 32768
        A(f"ds_read_b128 {v(Xf[b][0],4)}, {v(hiX+ks)} offset:{off}")
        A(f"ds_read_b128 {v(Xf[b][1],4)}, {v(hiX+ks)} offset:{off+4096}")
        A(f"ds_read_b64_tr_b16 {v(Wf[b],2)}, {v(hiW)} offset:{off+ks*4096}")
        A(f"ds_read_b64_tr_b16 {v(Wf[b]+2,2)}, {v(hiW)} offset:{off+ks*4096+1024}")

    def mainloop(isV, tag):
        for st in range(10):
            nout = min(2, 9 - st) * 4
            A(f"s_waitcnt vmcnt({nout})")
            A("s_barrier")
            if st in (0, 5): ST.stamp()
            if st + 3 <= 9 and not os.environ.get("NODMA"): dma(st + 3)
            if os.environ.get("NOCOMP"): continue
            reads(st, 0)
            for ks in range(4):
                b = ks % 2
                if ks < 3: reads(st, ks + 1)
                A(f"s_waitcnt lgkmcnt({4 if ks < 3 else 0})")
                for ti in range(2):
                    c = "0" if (st == 0 and ks == 0) else v(acc[ti], 16)
                    if isV: A(f"v_mfma_f32_32x32x16_bf16 {v(acc[ti],16)}, {v(Xf[b][ti],4)}, {v(Wf[b],4)}, {c}")
                    else:   A(f"v_mfma_f32_32x32x16_bf16 {v(acc[ti],16)}, {v(Wf[b],4)}, {v(Xf[b][ti],4)}, {c}")
                if os.environ.get("NOSTAT"): continue
                L = A.newlabel(f"{name}_{tag}_ns")
                A(f"s_cmp_eq_u32 {s(sWC)}, {ks}")
                A(f"s_cbranch_scc0 {L}")
                for j in range(4):
                    for ti in range(2):
                        A(f"v_dot2c_f32_bf16 {v(vSt+2*ti)}, {v(Xf[b][ti]+j)}, {v(vOne)}")
                        A(f"v_dot2c_f32_bf16 {v(vSt+2*ti+1)}, {v(Xf[b][ti]+j)}, {v(Xf[b][ti]+j)}")
                A.label(L)
                L = A.newlabel(f"{name}_{tag}_nc")
                A(f"s_cmp_eq_u32 {s(sWR)}, {ks % 2}")
                A(f"s_cbranch_scc0 {L}")
                for j in range(4):
                    A(f"v_dot2c_f32_bf16 {v(vCs)}, {v(Wf[b]+j)}, {v(vOne)}")
                A.label(L)

    def stats_exchange():
        A(f"s_lshl_b32 {s(sT0)}, {s(sWC)}, 1")
        A(f"v_add_u32 {v(t[0])}, {s(sT0)}, {v(vHb)}")
        A(f"v_lshlrev_b32 {v(t[0])}, 7, {v(t[0])}")
        A(f"s_lshl_b32 {s(sT1)}, {s(sWR)}, 6")
        A(f"v_add3_u32 {v(t[0])}, {v(t[0])}, {s(sT1)}, {v(vLi)}")
        A(f"v_lshlrev_b32 {v(t[0])}, 3, {v(t[0])}")
        A(f"ds_write_b64 {v(t[0])}, {v(vSt,2)} offset:0")
        A(f"ds_write_b64 {v(t[0])}, {v(vSt+2,2)} offset:256")
        A(f"s_lshl_b32 {s(sT0)}, {s(sWR)}, 1")
        A(f"v_add_u32 {v(t[1])}, {s(sT0)}, {v(vHb)}")
        A(f"v_lshlrev_b32 {v(t[1])}, 7, {v(t[1])}")
        A(f"s_lshl_b32 {s(sT1)}, {s(sWC)}, 5")
        A(f"v_add3_u32 {v(t[1])}, {v(t[1])}, {s(sT1)}, {v(vLi)}")
        A(f"v_lshlrev_b32 {v(t[1])}, 2, {v(t[1])}")
        A(f"ds_write_b32 {v(t[1])}, {v(vCs)} offset:8192")
        A("s_waitcnt lgkmcnt(0)")
        A("s_barrier")
        Lc = A.newlabel(f"{name}_redc"); Ld = A.newlabel(f"{name}_redd")
        A(f"s_cmp_ge_u32 {s(sWV)}, 2")
        A(f"s_cbranch_scc1 {Lc}")
        A(f"v_and_b32 {v(t[0])}, 127, v0")
        A(f"v_lshlrev_b32 {v(t[0])}, 3, {v(t[0])}")
        P = Xf[0][0]
        for i in range(8):
            A(f"ds_read_b64 {v(P+2*i,2)}, {v(t[0])} offset:{i*1024}")
        A("s_waitcnt lgkmcnt(0)")
        for i in range(1, 8):
            A(f"v_add_f32 {v(P)}, {v(P)}, {v(P+2*i)}")
            A(f"v_add_f32 {v(P+1)}, {v(P+1)}, {v(P+2*i+1)}")
        A(f"v_mul_f32 {v(P)}, {f32bits(1.0/D):#x}, {v(P)}")
        A(f"v_mul_f32 {v(P+1)}, {f32bits(1.0/D):#x}, {v(P+1)}")
        A(f"v_fma_f32 {v(P+1)}, -{v(P)}, {v(P)}, {v(P+1)}")
        A(f"v_max_f32 {v(P+1)}, 0, {v(P+1)}")
        A(f"v_add_f32 {v(P+1)}, {f32bits(EPS):#x}, {v(P+1)}")
        A(f"v_rsq_f32 {v(P+1)}, {v(P+1)}")
        A("s_nop 0")
        A(f"ds_write_b64 {v(t[0])}, {v(P,2)} offset:10240")
        A(f"s_branch {Ld}")
        A.label(Lc)
        A(f"s_cmp_ge_u32 {s(sWV)}, 4")
        A(f"s_cbranch_scc1 {Ld}")
        A(f"v_and_b32 {v(t[0])}, 127, v0")
        A(f"v_lshlrev_b32 {v(t[0])}, 2, {v(t[0])}")
        for i in range(4):
            A(f"ds_read_b32 {v(P+i)}, {v(t[0])} offset:{8192+i*512}")
        A("s_waitcnt lgkmcnt(0)")
        A(f"v_add_f32 {v(P)}, {v(P)}, {v(P+1)}")
        A(f"v_add_f32 {v(P+2)}, {v(P+2)}, {v(P+3)}")
        A(f"v_add_f32 {v(P)}, {v(P)}, {v(P+2)}")
        A(f"ds_write_b32 {v(t[0])}, {v(P)} offset:11264")
        A.label(Ld)
        A("s_waitcnt lgkmcnt(0)")
        A("s_barrier")

    LV = f"{name}_V"
    A(f"s_cmp_ge_u32 {s(sCG)}, 10")
    A(f"s_cbranch_scc1 {LV}")
    n0 = ST.n
    mainloop(False, "qk")
    ST.stamp()
    stats_exchange()
    ST.stamp()
    P = Xf[0][0]
    M = Wf[0]
    A(f"s_lshl_b32 {s(sT0)}, {s(sWR)}, 6")
    A(f"v_add_u32 {v(t[0])}, {s(sT0)}, {v(vLi)}")
    A(f"v_lshlrev_b32 {v(t[0])}, 3, {v(t[0])}")
    A(f"ds_read_b64 {v(M,2)}, {v(t[0])} offset:10240")
    A(f"ds_read_b64 {v(M+2,2)}, {v(t[0])} offset:{10240+256}")
    A(f"s_lshl_b32 {s(sT0)}, {s(sWC)}, 7")
    A(f"v_lshl_add_u32 {v(t[1])}, {v(vHb)}, 4, {s(sT0)}")
    for g in range(4):
        A(f"ds_read_b128 {v(P+4*g,4)}, {v(t[1])} offset:{11264+32*g}")
    A(f"s_cmp_ge_u32 {s(sCG)}, 5")
    A(f"s_cselect_b32 {s(sT0)}, {WS_KM:#x}, {WS_QM:#x}")
    A(f"s_cselect_b32 {s(sT1)}, {WS_KR-WS_QR:#x}, 0")
    A(f"s_cselect_b32 {s(sT2)}, 1.0, {f32bits(QSCALE):#x}")
    A(f"s_cselect_b32 {s(sT3)}, 5, 0")
    A(f"s_sub_u32 {s(sT3)}, {s(sCG)}, {s(sT3)}")
    A(f"s_lshl_b32 {s(sT3)}, {s(sT3)}, 2")
    A(f"s_add_u32 {s(sT3)}, {s(sT3)}, {s(sWC)}")
    A(f"s_lshl_b32 {s(sT3)}, {s(sT3)}, 3")
    A(f"s_add_u32 {s(sT1)}, {s(sT1)}, {WS_QR:#x}")
    sTT = 36
    A(f"s_lshl_b32 {s(sTT)}, {s(sRB)}, 2")
    A(f"s_lshl_b32 {s(37)}, {s(sWR)}, 1")
    A(f"s_add_u32 {s(sTT)}, {s(sTT)}, {s(37)}")
    vMb, vRb, vC0 = t[2], t[3], t[4]
    A(f"s_lshl_b32 {s(37)}, {s(sTT)}, 10")
    A(f"s_add_u32 {s(37)}, {s(37)}, {s(sT0)}")
    A(f"v_lshl_add_u32 {v(vMb)}, {v(vLane)}, 4, {s(37)}")
    A(f"s_lshl_b32 {s(37)}, {s(sTT)}, 8")
    A(f"s_add_u32 {s(37)}, {s(37)}, {s(sT1)}")
    A(f"v_lshl_add_u32 {v(vRb)}, {v(vLi)}, 3, {s(37)}")
    A(f"v_add_u32 {v(vC0)}, {s(sT3)}, {v(vHb)}")
    A("s_waitcnt lgkmcnt(0)")
    A(f"v_mul_f32 {v(M+1)}, {s(sT2)}, {v(M+1)}")
    A(f"v_mul_f32 {v(M+3)}, {s(sT2)}, {v(M+3)}")
    vH, vE, vA0 = t[5], t[6], t[7]
    vA1 = t[0]; vPk = M+4
    for g in range(4):
        A(f"v_add_u32 {v(vE)}, {2*g}, {v(vC0)}")
        A(f"v_mul_u32_u24 {v(vH)}, 205, {v(vE)}")
        A(f"v_lshrrev_b32 {v(vH)}, 10, {v(vH)}")
        A(f"v_mul_u32_u24 {v(vA0)}, 5, {v(vH)}")
        A(f"v_sub_u32 {v(vE)}, {v(vE)}, {v(vA0)}")
        A(f"v_lshl_add_u32 {v(vA0)}, {v(vH)}, 16, {v(vMb)}")
        A(f"v_lshrrev_b32 {v(t[1])}, 1, {v(vE)}")
        A(f"v_lshl_add_u32 {v(vA0)}, {v(t[1])}, 3, {v(vA0)}")
        A(f"v_lshl_add_u32 {v(vH)}, {v(vH)}, 14, {v(vRb)}")
        A(f"v_cmp_eq_u32 vcc, 4, {v(vE)}")
        A(f"v_add_u32 {v(vA1)}, 1024, {v(vA0)}")
        A(f"v_add_u32 {v(t[1])}, 256, {v(vH)}")
        A(f"v_cndmask_b32 {v(vA0)}, {v(vA0)}, {v(vH)}, vcc")
        A(f"v_cndmask_b32 {v(vA1)}, {v(vA1)}, {v(t[1])}, vcc")
        for ti in range(2):
            for r in range(4):
                x = acc[ti] + 4*g + r
                A(f"v_fma_f32 {v(x)}, -{v(M+2*ti)}, {v(P+4*g+r)}, {v(x)}")
            for r in range(4):
                x = acc[ti] + 4*g + r
                A(f"v_mul_f32 {v(x)}, {v(M+2*ti+1)}, {v(x)}")
            x = acc[ti] + 4*g
            A(f"v_cvt_pk_bf16_f32 {v(x)}, {v(x)}, {v(x+1)}")
            A(f"v_cvt_pk_bf16_f32 {v(x+1)}, {v(x+2)}, {v(x+3)}")
            A(f"buffer_store_dwordx2 {v(x,2)}, {v(vA0 if ti == 0 else vA1)}, {s(sWS,4)}, 0 offen")
    ST.finish(sWV, t[0] + (t[0] % 2))
    A("s_endpgm")
    ST.n = n0
    A.label(LV)
    mainloop(True, "v")
    ST.stamp()
    stats_exchange()
    ST.stamp()
    A(f"s_lshl_b32 {s(sT0)}, {s(sWC)}, 5")
    A(f"v_add_u32 {v(t[0])}, {s(sT0)}, {v(vLi)}")
    A(f"v_lshlrev_b32 {v(t[1])}, 2, {v(t[0])}")
    A(f"ds_read_b32 {v(vCs)}, {v(t[1])} offset:11264")
    A(f"s_sub_u32 {s(sT1)}, {s(sCG)}, 10")
    A(f"s_lshl_b32 {s(sT1)}, {s(sT1)}, 7")
    A(f"v_add_u32 {v(t[0])}, {s(sT1)}, {v(t[0])}")
    A(f"v_mul_u32_u24 {v(t[2])}, 3277, {v(t[0])}")
    A(f"v_lshrrev_b32 {v(t[2])}, 16, {v(t[2])}")
    A(f"v_mul_u32_u24 {v(t[3])}, 20, {v(t[2])}")
    A(f"v_sub_u32 {v(t[0])}, {v(t[0])}, {v(t[3])}")
    A(f"v_mul_u32_u24 {v(t[2])}, {128*640}, {v(t[2])}")
    A(f"v_lshl_add_u32 {v(t[2])}, {v(t[0])}, 4, {v(t[2])}")
    A(f"v_mul_u32_u24 {v(t[3])}, 320, {v(vHb)}")
    A(f"v_add_u32 {v(t[2])}, {v(t[2])}, {v(t[3])}")
    A(f"s_lshl_b32 {s(sT0)}, {s(sRB)}, 2")
    A(f"s_lshl_b32 {s(sT1)}, {s(sWR)}, 1")
    A(f"s_add_u32 {s(sT0)}, {s(sT0)}, {s(sT1)}")
    A(f"s_mul_i32 {s(sT0)}, {s(sT0)}, 1280")
    A(f"s_add_u32 {s(sT0)}, {s(sT0)}, {WS_VT:#x}")
    A(f"v_add_u32 {v(t[2])}, {s(sT0)}, {v(t[2])}")
    A(f"s_lshl_b32 {s(sT0)}, {s(sWR)}, 9")
    A(f"v_lshl_add_u32 {v(t[4])}, {v(vHb)}, 5, {s(sT0)}")
    P = Xf[0][0]
    for ti in range(2):
        for gh in range(2):
            for gg in range(2):
                g = gh*2 + gg
                A(f"ds_read_b128 {v(P+8*gg,4)}, {v(t[4])} offset:{10240+ti*256+g*64}")
                A(f"ds_read_b128 {v(P+8*gg+4,4)}, {v(t[4])} offset:{10240+ti*256+g*64+16}")
            A("s_waitcnt lgkmcnt(0)")
            for gg in range(2):
                g = gh*2 + gg
                for r in range(4):
                    x = acc[ti] + 4*g + r
                    A(f"v_fma_f32 {v(x)}, -{v(P+8*gg+2*r)}, {v(vCs)}, {v(x)}")
                for r in range(4):
                    x = acc[ti] + 4*g + r
                    A(f"v_mul_f32 {v(x)}, {v(P+8*gg+2*r+1)}, {v(x)}")
            x = acc[ti] + 8*gh
            for i in range(4):
                A(f"v_cvt_pk_bf16_f32 {v(x+i)}, {v(x+2*i)}, {v(x+2*i+1)}")
            A(f"buffer_store_dwordx4 {v(x,4)}, {v(t[2])}, {s(sWS,4)}, 0 offen offset:{ti*1280+gh*640}")
    ST.finish(sWV, t[0] + (t[0] % 2))
    A.label(END)
    A("s_endpgm")
    return A.text(), kernel_desc(name, R.hi), (256, 512, 131072)
```

```python
import sys, importlib
from common import *
import p1
HEADER = open("sequential_preLN__softmax_full_mha__glu_gated_swiglu__prompt.s.ref").read().split("; Override launch")[0]
def build(kernels, path):
    out = [HEADER.rstrip()]
    for (name, text, desc, (g, b, lds)) in kernels:
        out.append(f"; @launch kernel={name} grid=({g},1,1) block=({b},1,1) lds={lds}")
    out.append('.amdgcn_target "amdgcn-amd-amdhsa--gfx950"')
    out.append(".text")
    for (name, text, desc, cfg) in kernels:
        out.append(text)
        out.append(f"{name}_CODE_END:")
    out.append('.section .rodata,"a"')
    for (name, text, desc, cfg) in kernels:
        out.append(desc)
    open(path, "w").write("\n".join(out) + "\n")
if __name__ == "__main__":
    ks = []
    def add(name, fn):
        t, d, c = fn(name); ks.append((name, t, d, c))
    which = sys.argv[2].split(",") if len(sys.argv) > 2 else ["p1","p2","p3","p4","p5"]
    for p in which:
        m = importlib.import_module(p)
        add(m.NAME if hasattr(m,"NAME") else f"{p}_kernel", getattr(m, f"gen_{p}"))
    build(ks, sys.argv[1])
```

```python
from asmlib import *
KA_X, KA_WQKV, KA_WO, KA_BX, KA_W1, KA_W3, KA_W2, KA_OUT, KA_DBG, KA_WS = [8*i for i in range(10)]
T = 2048; D = 640; H = 32; DH = 20; F = 1728
WS_QM = 0x000000
WS_QR = 0x200000
WS_KM = 0x280000
WS_KR = 0x480000
WS_VT = 0x500000
WS_OM = 0x780000
WS_OR = 0x980000
WS_H  = 0xA00000
WS_G  = 0xC80000
WS_A2 = 0x1340000
WS_W13F = 0x1400000
WS_W2F = 0x1840000
WS_WOF = 0x1A60000
WS_CS  = 0x1B30000
WS_ST2 = 0x1B40000
WS_ST1 = 0x1B80000
WS_CSP = 0x1B90000
WS_SIZE = 0x1C00000
SZ_X = T*D*2; SZ_WQKV = D*3*D*2; SZ_WO = D*D*2; SZ_W1 = D*F*2; SZ_W2 = F*D*2; SZ_OUT = T*D*2
QSCALE = (DH ** -0.5) * 1.4426950408889634
EPS = 1e-5

def srd(A, sreg, ptr_sreg, size):
    A(f"s_mov_b32 {s(sreg)}, {s(ptr_sreg)}")
    A(f"s_and_b32 {s(sreg+1)}, {s(ptr_sreg+1)}, 0xffff")
    A(f"s_mov_b32 {s(sreg+2)}, {size:#x}")
    A(f"s_mov_b32 {s(sreg+3)}, 0x20000")

import os
STAMP = os.environ.get("STAMP", "0") == "1"
WS_STAMP = 0x1F00000
class Stamper:
    def __init__(self, A, wsptr, base=60):
        self.A = A; self.n = 0; self.base = base; self.ws = wsptr
    def stamp(self):
        if not STAMP: return
        if self.n == 0: self.A("s_memrealtime s[90:91]")
        self.A(f"s_memtime {s(self.base+2*self.n,2)}")
        self.A("s_waitcnt lgkmcnt(0)")
        self.n += 1
    def finish(self, sWV, vtmp, koff=0):
        if not STAMP: return
        A = self.A
        self.stamp()
        A("s_memrealtime s[92:93]")
        Stamper.cnt = getattr(Stamper, "cnt", 0) + 1
        L = f"stamp_skip_k{koff}_{Stamper.cnt}"
        A("s_waitcnt lgkmcnt(0) vmcnt(0)")
        A(f"s_cmp_eq_u32 {s(sWV)}, 0")
        A(f"s_cbranch_scc0 {L}")
        A(f"s_lshl_b32 s58, s2, 6")
        A(f"s_add_u32 s58, s58, {WS_STAMP + koff*0x10000:#x}")
        A(f"s_add_u32 s58, {s(self.ws)}, s58")
        A(f"s_addc_u32 s59, {s(self.ws+1)}, 0")
        A(f"v_mov_b32 {v(vtmp+1)}, 0")
        for i in range(self.n):
            if i == 0:
                A(f"v_mov_b32 {v(vtmp)}, {s(self.base)}")
            else:
                A(f"s_sub_u32 {s(self.base+2*i)}, {s(self.base+2*i)}, {s(self.base)}")
                A(f"v_mov_b32 {v(vtmp)}, {s(self.base+2*i)}")
            A(f"global_store_dword {v(vtmp+1)}, {v(vtmp)}, s[58:59] offset:{4*i}")
            A("s_nop 1")
        A("s_sub_u32 s92, s92, s90")
        A(f"v_mov_b32 {v(vtmp)}, s92")
        A(f"global_store_dword {v(vtmp+1)}, {v(vtmp)}, s[58:59] offset:60")
        A(f"v_mov_b32 {v(vtmp)}, s90")
        A(f"global_store_dword {v(vtmp+1)}, {v(vtmp)}, s[58:59] offset:56")
        A.label(L)


def rot_init(A, sPh, sIdx, nst, t0, t1):
    A(f"s_lshr_b32 {s(t0)}, s2, 3")
    A(f"s_and_b32 {s(t1)}, {s(t0)}, 7")
    A(f"s_lshl_b32 {s(t1)}, {s(t1)}, 2")
    A(f"s_lshr_b32 {s(t0)}, {s(t0)}, 3")
    A(f"s_mul_i32 {s(t0)}, {s(t0)}, 9")
    A(f"s_add_u32 {s(t0)}, {s(t0)}, {s(t1)}")
    A(f"s_and_b32 {s(t0)}, {s(t0)}, 31")
    A(f"s_mul_i32 {s(t0)}, {s(t0)}, {nst}")
    A(f"s_lshr_b32 {s(sPh)}, {s(t0)}, 5")
def rot_next(A, sPh, nst):
    A(f"s_add_u32 {s(sPh)}, {s(sPh)}, 1")
    A(f"s_cmp_eq_u32 {s(sPh)}, {nst}")
    A(f"s_cselect_b32 {s(sPh)}, 0, {s(sPh)}")


def touch_loop(A, name, items, sWS, vdst, scnt, stmp, maxfly=2):
    for k, (creg, cval, vaddr, srdreg, soff, mask) in enumerate(items):
        L = A.newlabel(f"{name}_t")
        if creg is not None:
            A(f"s_cmp_eq_u32 {s(creg)}, {cval}")
            A(f"s_cbranch_scc0 {L}")
        A(f"s_waitcnt vmcnt({maxfly-1})")
        A(f"s_mov_b32 {s(stmp)}, {soff:#x}")
        if mask: A(f"s_mov_b64 exec, {mask}")
        A(f"buffer_load_dword {v(vdst)}, {v(vaddr)}, {s(srdreg,4)}, {s(stmp)} offen")
        if mask: A(f"s_mov_b64 exec, -1")
        A.label(L)


def sched_seq(N, S, Ld=1):
    G = N // S
    assert G * S == N
    seq = [(S*g, 0) for g in range(min(Ld, G))]
    for g in range(G):
        if g + Ld < G: seq.append((S*(g+Ld), 0))
        for i in range(1, S): seq.append((S*g, i))
    assert len(seq) == N
    return seq
def sched_init(A, sU, S, t0, t1):
    A(f"s_lshr_b32 {s(t0)}, s2, 3")
    A(f"s_and_b32 {s(t1)}, {s(t0)}, 7")
    A(f"s_lshr_b32 {s(t0)}, {s(t0)}, 3")
    A(f"s_add_u32 {s(t0)}, {s(t0)}, {s(t1)}")
    if S & (S-1) == 0:
        A(f"s_and_b32 {s(sU)}, {s(t0)}, {S-1}")
    else:
        assert S == 3 or S == 5
        m = {3: 86, 5: 52}[S]
        A(f"s_mul_i32 {s(t1)}, {s(t0)}, {m}")
        A(f"s_lshr_b32 {s(t1)}, {s(t1)}, 8")
        A(f"s_mul_i32 {s(t1)}, {s(t1)}, {S}")
        A(f"s_sub_u32 {s(sU)}, {s(t0)}, {s(t1)}")
def sched_phys(A, sPh, sU, S, base, i):
    if i == 0:
        A(f"s_add_u32 {s(sPh)}, {s(sU)}, {base}")
    else:
        A(f"s_add_u32 {s(sPh)}, {s(sU)}, {i}")
        A(f"s_cmp_ge_u32 {s(sPh)}, {S}")
        A(f"s_cselect_b32 vcc_lo, {S}, 0")
        A(f"s_sub_u32 {s(sPh)}, {s(sPh)}, vcc_lo")
        if base: A(f"s_add_u32 {s(sPh)}, {s(sPh)}, {base}")
```

```python
from common import *
import os

def gen_p1(name="p1_qkv_kernel"):
    A = Asm()
    A.raw(kernel_header(name))
    END = f"{name}_END"
    sX, sW, sWS = 8, 12, 16
    sRB, sCG, sWV, sWR, sWC, sM, sXo, sWo = 20, 21, 22, 23, 28, 29, 30, 31
    sT0, sT1, sT2, sT3 = 32, 33, 34, 35
    sPh = 38
    ST = Stamper(A, 24)
    ST.stamp()
    A(f"s_cmp_ge_u32 s2, 256")
    A(f"s_cbranch_scc1 {END}")
    A(f"s_load_dwordx4 s[4:7], s[0:1], {KA_X}")
    A(f"s_load_dwordx2 s[24:25], s[0:1], {KA_WS}")
    A(f"s_and_b32 {s(sT0)}, s2, 7")
    A(f"s_lshr_b32 {s(sT1)}, s2, 3")
    A(f"s_lshr_b32 {s(sT2)}, {s(sT0)}, 2")
    A(f"s_lshl_b32 {s(sT2)}, {s(sT2)}, 3")
    A(f"s_and_b32 {s(sT3)}, {s(sT1)}, 7")
    A(f"s_add_u32 {s(sRB)}, {s(sT2)}, {s(sT3)}")
    A(f"s_and_b32 {s(sT2)}, {s(sT0)}, 3")
    A(f"s_lshl_b32 {s(sT2)}, {s(sT2)}, 2")
    A(f"s_lshr_b32 {s(sT3)}, {s(sT1)}, 3")
    A(f"s_add_u32 {s(sCG)}, {s(sT2)}, {s(sT3)}")
    A(f"s_load_dwordx2 s[26:27], s[0:1], {KA_DBG}")
    R = Regs(1, 128)
    vLane = R.alloc(); vLi = R.alloc(); vHb = R.alloc()
    vX0 = R.alloc(); vX1 = R.alloc(); vW0 = R.alloc(); vW1 = R.alloc()
    vXA = R.alloc(4, 1); vXB = R.alloc(4, 1); vWA = R.alloc(); vWB = R.alloc()
    vOne = R.alloc()
    vSt = R.alloc(4, 2)
    vCs = R.alloc()
    LA = R.alloc(6, 2); LB = R.alloc(6, 2)
    vFl = R.alloc(); vNeed = R.alloc(); SL = R.alloc(6, 2)
    sDB = 40; sOK = 44; sSb = 45; sCb = 46
    STX = 131072
    t = [R.alloc() for _ in range(8)]
    acc = [R.alloc(16, 4), R.alloc(16, 4)]
    Xf = [[R.alloc(4, 4), R.alloc(4, 4)] for _ in range(2)]
    Wf = [R.alloc(4, 4) for _ in range(2)]
    A(f"v_lshrrev_b32 {v(t[0])}, 6, v0")
    A(f"v_and_b32 {v(vLane)}, 63, v0")
    A(f"v_readfirstlane_b32 {s(sWV)}, {v(t[0])}")
    A(f"v_and_b32 {v(vLi)}, 31, {v(vLane)}")
    A(f"v_lshrrev_b32 {v(vHb)}, 5, {v(vLane)}")
    A(f"s_lshr_b32 {s(sWR)}, {s(sWV)}, 2")
    A(f"s_and_b32 {s(sWC)}, {s(sWV)}, 3")
    A(f"s_lshl_b32 {s(sM)}, {s(sWV)}, 11")
    code_touch(A, name, ("p2_kernel", "p2_kernel_CODE_END"), sWV, vLane, R.alloc(), 50, 52)
    A(f"s_lshl_b32 {s(sT0)}, {s(sRB)}, 7")
    A(f"s_lshl_b32 {s(sT1)}, {s(sWV)}, 4")
    A(f"s_add_u32 {s(sT0)}, {s(sT0)}, {s(sT1)}")
    A(f"v_lshrrev_b32 {v(t[0])}, 3, {v(vLane)}")
    A(f"v_add_u32 {v(t[0])}, {s(sT0)}, {v(t[0])}")
    A(f"v_mul_u32_u24 {v(t[0])}, 1280, {v(t[0])}")
    A(f"v_and_b32 {v(t[1])}, 7, {v(vLane)}")
    A(f"v_lshrrev_b32 {v(t[2])}, 4, {v(vLane)}")
    A(f"v_xor_b32 {v(t[1])}, {v(t[1])}, {v(t[2])}")
    A(f"v_lshl_add_u32 {v(vX0)}, {v(t[1])}, 4, {v(t[0])}")
    A(f"v_xor_b32 {v(t[1])}, 4, {v(t[1])}")
    A(f"v_lshl_add_u32 {v(vX1)}, {v(t[1])}, 4, {v(t[0])}")
    A(f"v_add_u32 {v(vX1)}, 10240, {v(vX1)}")
    A(f"s_lshl_b32 {s(sT1)}, {s(sWV)}, 3")
    A(f"v_add_u32 {v(t[0])}, {s(sT1)}, {v(t[2])}")
    A(f"v_mul_u32_u24 {v(t[0])}, 3840, {v(t[0])}")
    A(f"s_lshl_b32 {s(sT2)}, {s(sCG)}, 8")
    A(f"v_add_u32 {v(t[0])}, {s(sT2)}, {v(t[0])}")
    A(f"v_bfe_u32 {v(t[1])}, {v(vLane)}, 2, 2")
    A(f"v_xor_b32 {v(t[1])}, {v(t[1])}, {v(t[2])}")
    A(f"v_lshl_add_u32 {v(t[0])}, {v(t[1])}, 6, {v(t[0])}")
    A(f"v_and_b32 {v(t[1])}, 3, {v(vLane)}")
    A(f"v_lshl_add_u32 {v(vW0)}, {v(t[1])}, 4, {v(t[0])}")
    A(f"v_add_u32 {v(vW1)}, 15360, {v(vW0)}")
    A("s_waitcnt lgkmcnt(0)")
    srd(A, sX, 4, SZ_X); srd(A, sW, 6, SZ_WQKV); srd(A, sWS, 24, WS_SIZE); srd(A, sDB, 26, 256)
    A(f"s_lshl_b32 {s(sT0)}, {s(sRB)}, 7")
    A(f"s_lshl_b32 {s(sT1)}, {s(sCG)}, 3")
    A(f"s_add_u32 {s(sT0)}, {s(sT0)}, {s(sT1)}")
    A(f"s_add_u32 s47, {s(sT0)}, {s(sWV)}")
    A(f"s_mul_i32 {s(sT1)}, s47, 1280")
    A(f"v_lshlrev_b32 {v(vFl)}, 2, {v(vLane)}")
    for i in range(5): A(f"buffer_load_dword {v(LA+i)}, {v(vFl)}, {s(sX,4)}, {s(sT1)} offen offset:{256*i}")
    LIDLE = f"{name}_idle"
    A(f"s_mul_i32 {s(sT1)}, {s(sRB)}, 40")
    A(f"s_mul_i32 {s(sT2)}, {s(sWV)}, 5")
    A(f"s_add_u32 {s(sT1)}, {s(sT1)}, {s(sT2)}")
    A(f"s_mul_i32 {s(sT1)}, {s(sT1)}, 3840")
    A(f"s_lshl_b32 {s(sT2)}, {s(sCG)}, 8")
    A(f"s_add_u32 {s(sT1)}, {s(sT1)}, {s(sT2)}")
    A(f"s_cmp_ge_u32 {s(sCG)}, 15")
    A(f"s_cbranch_scc1 {LIDLE}")
    for i in range(5):
        A(f"buffer_load_dword {v(LB+i)}, {v(vFl)}, {s(sW,4)}, {s(sT1)} offen")
        A(f"s_add_u32 {s(sT1)}, {s(sT1)}, 3840")
    def token_stats():
        A(f"v_mov_b32 {v(vOne)}, 0x3f803f80")
        A(f"v_mov_b32 {v(vSt)}, 0"); A(f"v_mov_b32 {v(vSt+1)}, 0")
        A("s_nop 1")
        for i in range(5):
            A(f"v_dot2c_f32_bf16 {v(vSt)}, {v(LA+i)}, {v(vOne)}")
            A(f"v_dot2c_f32_bf16 {v(vSt+1)}, {v(LA+i)}, {v(LA+i)}")
        A("s_nop 2")
        for ror in (8, 4, 2, 1):
            A(f"v_add_f32_dpp {v(vSt)}, {v(vSt)}, {v(vSt)} row_ror:{ror} row_mask:0xf bank_mask:0xf")
            A(f"v_add_f32_dpp {v(vSt+1)}, {v(vSt+1)}, {v(vSt+1)} row_ror:{ror} row_mask:0xf bank_mask:0xf")
            A("s_nop 0")
        for sw in ("v_permlane16_swap_b32", "v_permlane32_swap_b32"):
            for c_ in range(2):
                A(f"v_mov_b32 {v(vSt+2)}, {v(vSt+c_)}")
                A(f"v_mov_b32 {v(vSt+3)}, {v(vSt+c_)}")
                A("s_nop 1")
                A(f"{sw} {v(vSt+2)}, {v(vSt+3)}")
                A(f"v_add_f32 {v(vSt+c_)}, {v(vSt+2)}, {v(vSt+3)}")
        A(f"v_mul_f32 {v(vSt)}, {f32bits(1.0/D):#x}, {v(vSt)}")
        A(f"v_mul_f32 {v(vSt+1)}, {f32bits(1.0/D):#x}, {v(vSt+1)}")
        A(f"v_fma_f32 {v(vSt+1)}, -{v(vSt)}, {v(vSt)}, {v(vSt+1)}")
        A(f"v_max_f32 {v(vSt+1)}, 0, {v(vSt+1)}")
        A(f"v_add_f32 {v(vSt+1)}, {f32bits(EPS):#x}, {v(vSt+1)}")
        A(f"v_rsq_f32 {v(vSt+1)}, {v(vSt+1)}")
        A(f"s_lshl_b32 {s(sT0)}, s47, 3")
        A(f"s_add_u32 {s(sT0)}, {s(sT0)}, {WS_ST1:#x}")
        A(f"v_mov_b32 {v(vSt+2)}, 0")
        A(f"s_mov_b64 exec, 1")
        A(f"buffer_store_dwordx2 {v(vSt,2)}, {v(vSt+2)}, {s(sWS,4)}, {s(sT0)} offen sc1")
        A(f"s_mov_b64 exec, -1")
    def write_flag():
        A(f"s_lshl_b32 {s(sT0)}, {s(sRB)}, 4")
        A(f"s_add_u32 {s(sT0)}, {s(sT0)}, {s(sCG)}")
        A(f"v_mov_b32 {v(t[6])}, 0")
        A(f"v_mov_b32 {v(t[7])}, 1")
        A(f"s_mov_b64 exec, 1")
        A(f"buffer_store_byte {v(t[7])}, {v(t[6])}, {s(sDB,4)}, {s(sT0)} offen sc1")
        A(f"s_mov_b64 exec, -1")
    SS = int(os.environ.get("S1", 5))
    seq = sched_seq(10, SS, int(os.environ.get("LD", 1)))
    sU = 39
    sched_init(A, sU, SS, sT0, sT1)
    def dma(st):
        base = (st % 4) * 32768
        sched_phys(A, sPh, sU, SS, *seq[st])
        A(f"s_lshl_b32 {s(sXo)}, {s(sPh)}, 7")
        A(f"s_add_u32 m0, {s(sM)}, {base}")
        A(f"s_mul_i32 {s(sWo)}, {s(sPh)}, {64*3840}")
        A(f"buffer_load_dwordx4 {v(vX0)}, {s(sX,4)}, {s(sXo)} offen lds")
        A(f"s_add_u32 m0, {s(sM)}, {base+1024}")
        A("s_nop 0")
        A(f"buffer_load_dwordx4 {v(vX1)}, {s(sX,4)}, {s(sXo)} offen lds")
        A(f"s_add_u32 m0, {s(sM)}, {base+16384}")
        A("s_nop 0")
        A(f"buffer_load_dwordx4 {v(vW0)}, {s(sW,4)}, {s(sWo)} offen lds")
        A(f"s_add_u32 m0, {s(sM)}, {base+16384+1024}")
        A("s_nop 0")
        A(f"buffer_load_dwordx4 {v(vW1)}, {s(sW,4)}, {s(sWo)} offen lds")
    ST.stamp()
    DIST = int(os.environ.get('P1_DIST', 2))
    for st in range(DIST): dma(st)
    A(f"s_waitcnt vmcnt({4*DIST})")
    token_stats()
    A(f"v_mov_b32 {v(SL)}, 0"); A(f"v_mov_b32 {v(SL+1)}, 0")
    for i in range(5):
        A(f"v_lshlrev_b32 {v(SL+2)}, 16, {v(LB+i)}")
        A(f"v_and_b32 {v(SL+3)}, 0xffff0000, {v(LB+i)}")
        A(f"v_add_f32 {v(SL)}, {v(SL)}, {v(SL+2)}")
        A(f"v_add_f32 {v(SL+1)}, {v(SL+1)}, {v(SL+3)}")
    A(f"s_lshl_b32 {s(sT0)}, {s(sWV)}, 9")
    A(f"s_add_u32 {s(sT0)}, {s(sT0)}, {STX}")
    A(f"v_lshl_add_u32 {v(SL+2)}, {v(vLane)}, 3, {s(sT0)}")
    A(f"ds_write_b64 {v(SL+2)}, {v(SL,2)}")
    A(f"v_lshrrev_b32 {v(t[6])}, 2, {v(vLane)}")
    A(f"v_cmp_eq_u32 vcc, {s(sRB)}, {v(t[6])}")
    A(f"v_mov_b32 {v(t[7])}, 0x01010101")
    A("s_nop 0")
    A(f"v_cndmask_b32 {v(vNeed)}, 0, {v(t[7])}, vcc")
    A(f"s_lshr_b32 {s(sT0)}, {s(sCG)}, 2")
    A(f"v_and_b32 {v(t[6])}, 3, {v(vLane)}")
    A(f"v_cmp_eq_u32 vcc, {s(sT0)}, {v(t[6])}")
    A(f"s_and_b32 {s(sT0)}, {s(sCG)}, 3")
    A(f"s_lshl_b32 {s(sT0)}, {s(sT0)}, 3")
    A(f"s_lshl_b32 {s(sT0)}, 1, {s(sT0)}")
    A(f"v_mov_b32 {v(t[7])}, {s(sT0)}")
    A(f"v_cndmask_b32 {v(t[7])}, 0, {v(t[7])}, vcc")
    A(f"v_or_b32 {v(vNeed)}, {v(vNeed)}, {v(t[7])}")
    A("s_waitcnt lgkmcnt(0)")
    A(f"s_lshl_b32 {s(sT0)}, {s(sWR)}, 6")
    A(f"v_add_u32 {v(t[0])}, {s(sT0)}, {v(vLi)}")
    A(f"v_lshlrev_b32 {v(t[0])}, 7, {v(t[0])}")
    A(f"v_bfe_u32 {v(t[1])}, {v(vLi)}, 1, 3")
    A(f"v_xor_b32 {v(t[1])}, {v(t[1])}, {v(vHb)}")
    for ks in range(4):
        A(f"v_xor_b32 {v(t[2])}, {2*ks}, {v(t[1])}")
        A(f"v_lshl_add_u32 {v(vXA+ks)}, {v(t[2])}, 4, {v(t[0])}")
        A(f"v_add_u32 {v(vXB+ks)}, 0x10000, {v(vXA+ks)}")
    A(f"v_bfe_u32 {v(t[0])}, {v(vLane)}, 2, 2")
    A(f"v_lshl_add_u32 {v(t[1])}, {v(vHb)}, 3, {v(t[0])}")
    A(f"v_lshlrev_b32 {v(t[1])}, 8, {v(t[1])}")
    A(f"v_xor_b32 {v(t[0])}, {s(sWC)}, {v(t[0])}")
    A(f"v_lshl_add_u32 {v(t[1])}, {v(t[0])}, 6, {v(t[1])}")
    A(f"v_bfe_u32 {v(t[0])}, {v(vLane)}, 4, 1")
    A(f"v_lshl_add_u32 {v(t[1])}, {v(t[0])}, 5, {v(t[1])}")
    A(f"v_and_b32 {v(t[0])}, 3, {v(vLane)}")
    A(f"v_lshl_add_u32 {v(t[1])}, {v(t[0])}, 3, {v(t[1])}")
    A(f"v_add_u32 {v(vWA)}, 16384, {v(t[1])}")
    A(f"v_add_u32 {v(vWB)}, 0x10000, {v(vWA)}")

    def reads(st, ks):
        slot = st % 4; b = ks % 2
        hiX = vXB if slot >= 2 else vXA; hiW = vWB if slot >= 2 else vWA
        off = (slot % 2) * 32768
        A(f"ds_read_b128 {v(Xf[b][0],4)}, {v(hiX+ks)} offset:{off}")
        A(f"ds_read_b128 {v(Xf[b][1],4)}, {v(hiX+ks)} offset:{off+4096}")
        A(f"ds_read_b64_tr_b16 {v(Wf[b],2)}, {v(hiW)} offset:{off+ks*4096}")
        A(f"ds_read_b64_tr_b16 {v(Wf[b]+2,2)}, {v(hiW)} offset:{off+ks*4096+1024}")

    assert DIST == 2
    def poll_issue():
        A(f"v_lshlrev_b32 {v(vFl)}, 2, {v(vLane)}")
        A(f"buffer_load_dword {v(vFl)}, {v(vFl)}, {s(sDB,4)}, 0 offen sc1")
    def poll_eval():
        A(f"v_and_b32 {v(vFl)}, {v(vFl)}, {v(vNeed)}")
        A(f"v_cmp_eq_u32 vcc, {v(vFl)}, {v(vNeed)}")
        A(f"s_cmp_eq_u64 vcc, -1")
        A(f"s_cselect_b32 {s(sOK)}, 1, 0")
    def stat_loads():
        A(f"s_lshl_b32 {s(sSb)}, {s(sRB)}, 10")
        A(f"s_add_u32 {s(sSb)}, {s(sSb)}, {WS_ST1:#x}")
        A(f"s_lshl_b32 {s(sCb)}, {s(sCG)}, 9")
        A(f"s_add_u32 {s(sCb)}, {s(sCb)}, {WS_CSP:#x}")
        A(f"s_cmp_eq_u32 {s(sOK)}, 1")
        A(f"s_cselect_b32 {s(sSb)}, {s(sSb)}, 0")
        A(f"s_cselect_b32 {s(sCb)}, {s(sCb)}, 0")
        A(f"v_and_b32 {v(t[6])}, 127, v0")
        A(f"v_lshlrev_b32 {v(t[7])}, 3, {v(t[6])}")
        A(f"buffer_load_dwordx2 {v(SL,2)}, {v(t[7])}, {s(sWS,4)}, {s(sSb)} offen sc1")
        A(f"v_lshrrev_b32 {v(t[7])}, 7, v0")
        A(f"v_mul_u32_u24 {v(t[7])}, {4*7680}, {v(t[7])}")
        A(f"v_lshl_add_u32 {v(t[7])}, {v(t[6])}, 2, {v(t[7])}")
        for i in range(4):
            A(f"buffer_load_dword {v(SL+2+i)}, {v(t[7])}, {s(sWS,4)}, {s(sCb)} offen sc1")
            if i < 3: A(f"s_add_u32 {s(sCb)}, {s(sCb)}, 7680")

    def mainloop(isV, tag):
        q0 = ["st0"]*4 + ["st1"]*4 + ["sa"]; qx = list(q0)
        def need(q, tags):
            last = max(i for i, x in enumerate(q) if x in tags)
            return len(q) - 1 - last
        def wait(tags):
            n0, nx = need(q0, tags), need(qx, tags)
            if n0 == nx:
                A(f"s_waitcnt vmcnt({n0})")
            else:
                L1 = A.newlabel(f"{name}_{tag}_wa"); L2 = A.newlabel(f"{name}_{tag}_wb")
                A(f"s_cmp_eq_u32 {s(sWV)}, 0")
                A(f"s_cbranch_scc1 {L1}")
                A(f"s_waitcnt vmcnt({nx})")
                A(f"s_branch {L2}")
                A.label(L1)
                A(f"s_waitcnt vmcnt({n0})")
                A.label(L2)
        PP = int(os.environ.get("PP", 5)); PE = int(os.environ.get("PE", 8))
        FL = int(os.environ.get("FL", 2))
        def sync(st):
            tags = [f"st{st}"]
            if st == FL: tags += ["sa", "cs"]
            if st == PE - 1: tags += ["poll"]
            wait(tags)
            if st == PE - 1:
                L = A.newlabel(f"{name}_{tag}_pe")
                A(f"s_cmp_eq_u32 {s(sWV)}, 0")
                A(f"s_cbranch_scc0 {L}")
                poll_eval()
                A(f"v_mov_b32 {v(t[6])}, {STX}")
                A(f"v_mov_b32 {v(t[7])}, {s(sOK)}")
                A(f"ds_write_b32 {v(t[6])}, {v(t[7])}")
                A("s_waitcnt lgkmcnt(0)")
                A.label(L)
            A("s_barrier")
            if st in (0, 5) or os.environ.get('P1_ALLST'): ST.stamp()
            if st == 0:
                L = A.newlabel(f"{name}_{tag}_cs")
                A(f"s_cmp_eq_u32 {s(sWV)}, 0")
                A(f"s_cbranch_scc0 {L}")
                A(f"v_lshlrev_b32 {v(t[6])}, 3, {v(vLane)}")
                A(f"v_add_u32 {v(t[7])}, {STX}, {v(t[6])}")
                P = Xf[0][0]
                for i in range(8): A(f"ds_read_b64 {v(P+2*i,2)}, {v(t[7])} offset:{i*512}")
                A("s_waitcnt lgkmcnt(0)")
                for i in range(1, 8):
                    A(f"v_add_f32 {v(P)}, {v(P)}, {v(P+2*i)}")
                    A(f"v_add_f32 {v(P+1)}, {v(P+1)}, {v(P+2*i+1)}")
                A(f"s_mul_i32 {s(sT0)}, {s(sRB)}, 7680")
                A(f"s_lshl_b32 {s(sT1)}, {s(sCG)}, 9")
                A(f"s_add_u32 {s(sT0)}, {s(sT0)}, {s(sT1)}")
                A(f"s_add_u32 {s(sT0)}, {s(sT0)}, {WS_CSP:#x}")
                A(f"buffer_store_dwordx2 {v(P,2)}, {v(t[6])}, {s(sWS,4)}, {s(sT0)} offen sc1")
                A("s_nop 1")
                A.label(L)
                q0.append("cs")
            if st + DIST <= 9 and not os.environ.get("NODMA"):
                dma(st + DIST); q0.extend([f"st{st+DIST}"]*4); qx.extend([f"st{st+DIST}"]*4)
            if st == PE - 1:
                A(f"v_mov_b32 {v(t[6])}, {STX}")
                A(f"ds_read_b32 {v(t[7])}, {v(t[6])}")
                A("s_waitcnt lgkmcnt(0)")
                A(f"v_readfirstlane_b32 {s(sOK)}, {v(t[7])}")
                stat_loads(); q0.extend(["sl"]*5); qx.extend(["sl"]*5)
            if st == PP or st == FL:
                L = A.newlabel(f"{name}_{tag}_fl")
                A(f"s_cmp_eq_u32 {s(sWV)}, 0")
                A(f"s_cbranch_scc0 {L}")
                if st == FL and not os.environ.get("NOFLAG"): write_flag(); q0.append("fl")
                if st == PP: poll_issue(); q0.append("poll")
                A.label(L)
        def step(st, ks):
            b = ks % 2
            for ti in range(2):
                c = "0" if (st == 0 and ks == 0) else v(acc[ti], 16)
                if isV: A(f"v_mfma_f32_32x32x16_bf16 {v(acc[ti],16)}, {v(Xf[b][ti],4)}, {v(Wf[b],4)}, {c}")
                else:   A(f"v_mfma_f32_32x32x16_bf16 {v(acc[ti],16)}, {v(Wf[b],4)}, {v(Xf[b][ti],4)}, {c}")
        sync(0)
        reads(0, 0)
        for st in range(10):
            for ks in range(4):
                if ks < 3:
                    reads(st, ks + 1)
                    A("s_waitcnt lgkmcnt(4)")
                    step(st, ks)
                elif st < 9:
                    A("s_waitcnt lgkmcnt(0)")
                    sync(st + 1)
                    reads(st + 1, 0)
                    step(st, ks)
                else:
                    A("s_waitcnt lgkmcnt(0)")
                    step(st, ks)

    def stats_exchange(tag):
        Lok = A.newlabel(f"{name}_{tag}_ok"); Lsp = A.newlabel(f"{name}_{tag}_spin"); Lgot = A.newlabel(f"{name}_{tag}_got")
        A("s_waitcnt vmcnt(0)")
        A(f"s_cmp_eq_u32 {s(sOK)}, 1")
        if os.environ.get("P1_FORCE_SLOW"): A(f"s_cmp_eq_u32 {s(sOK)}, 7")
        A(f"s_cbranch_scc1 {Lok}")
        A(f"s_mov_b32 s48, 0")
        A.label(Lsp)
        poll_issue()
        A("s_waitcnt vmcnt(0)")
        poll_eval()
        A(f"s_cmp_eq_u32 {s(sOK)}, 1")
        A(f"s_cbranch_scc1 {Lgot}")
        A("s_sleep 2")
        A(f"s_add_u32 s48, s48, 1")
        A(f"s_cmp_lt_u32 s48, 0x40000")
        A(f"s_cbranch_scc1 {Lsp}")
        A(f"s_mov_b32 {s(sOK)}, 1")
        A.label(Lgot)
        stat_loads()
        A("s_waitcnt vmcnt(0)")
        A.label(Lok)
        A(f"v_add_f32 {v(SL+2)}, {v(SL+2)}, {v(SL+3)}")
        A(f"v_add_f32 {v(SL+4)}, {v(SL+4)}, {v(SL+5)}")
        A(f"v_add_f32 {v(SL+2)}, {v(SL+2)}, {v(SL+4)}")
        A(f"v_lshlrev_b32 {v(t[0])}, 2, v0")
        A(f"ds_write_b32 {v(t[0])}, {v(SL+2)} offset:8192")
        Lc = A.newlabel(f"{name}_redc"); Ld = A.newlabel(f"{name}_redd")
        A(f"s_cmp_ge_u32 {s(sWV)}, 2")
        A(f"s_cbranch_scc1 {Lc}")
        A(f"v_lshlrev_b32 {v(t[0])}, 3, v0")
        A(f"ds_write_b64 {v(t[0])}, {v(SL,2)} offset:10240")
        A.label(Lc)
        A("s_waitcnt lgkmcnt(0)")
        A("s_barrier")
        A(f"s_cmp_ge_u32 {s(sWV)}, 2")
        A(f"s_cbranch_scc1 {Ld}")
        P = Xf[0][0]
        A(f"v_lshlrev_b32 {v(t[0])}, 2, v0")
        for i in range(4):
            A(f"ds_read_b32 {v(P+i)}, {v(t[0])} offset:{8192+i*512}")
        A("s_waitcnt lgkmcnt(0)")
        A(f"v_add_f32 {v(P)}, {v(P)}, {v(P+1)}")
        A(f"v_add_f32 {v(P+2)}, {v(P+2)}, {v(P+3)}")
        A(f"v_add_f32 {v(P)}, {v(P)}, {v(P+2)}")
        A(f"ds_write_b32 {v(t[0])}, {v(P)} offset:11264")
        A.label(Ld)
        A("s_waitcnt lgkmcnt(0)")
        A("s_barrier")

    LV = f"{name}_V"
    A(f"s_cmp_ge_u32 {s(sCG)}, 10")
    A(f"s_cbranch_scc1 {LV}")
    n0 = ST.n
    mainloop(False, "qk")
    ST.stamp()
    stats_exchange("qk")
    ST.stamp()
    P = Xf[0][0]
    M = Wf[0]
    A(f"s_lshl_b32 {s(sT0)}, {s(sWR)}, 6")
    A(f"v_add_u32 {v(t[0])}, {s(sT0)}, {v(vLi)}")
    A(f"v_lshlrev_b32 {v(t[0])}, 3, {v(t[0])}")
    A(f"ds_read_b64 {v(M,2)}, {v(t[0])} offset:10240")
    A(f"ds_read_b64 {v(M+2,2)}, {v(t[0])} offset:{10240+256}")
    A(f"s_lshl_b32 {s(sT0)}, {s(sWC)}, 7")
    A(f"v_lshl_add_u32 {v(t[1])}, {v(vHb)}, 4, {s(sT0)}")
    for g in range(4):
        A(f"ds_read_b128 {v(P+4*g,4)}, {v(t[1])} offset:{11264+32*g}")
    A(f"s_cmp_ge_u32 {s(sCG)}, 5")
    A(f"s_cselect_b32 {s(sT0)}, {WS_KM:#x}, {WS_QM:#x}")
    A(f"s_cselect_b32 {s(sT1)}, {WS_KR-WS_QR:#x}, 0")
    A(f"s_cselect_b32 {s(sT2)}, 1.0, {f32bits(QSCALE):#x}")
    A(f"s_cselect_b32 {s(sT3)}, 5, 0")
    A(f"s_sub_u32 {s(sT3)}, {s(sCG)}, {s(sT3)}")
    A(f"s_lshl_b32 {s(sT3)}, {s(sT3)}, 2")
    A(f"s_add_u32 {s(sT3)}, {s(sT3)}, {s(sWC)}")
    A(f"s_lshl_b32 {s(sT3)}, {s(sT3)}, 3")
    A(f"s_add_u32 {s(sT1)}, {s(sT1)}, {WS_QR:#x}")
    sTT = 36
    A(f"s_lshl_b32 {s(sTT)}, {s(sRB)}, 2")
    A(f"s_lshl_b32 {s(37)}, {s(sWR)}, 1")
    A(f"s_add_u32 {s(sTT)}, {s(sTT)}, {s(37)}")
    vMb, vRb, vC0 = t[2], t[3], t[4]
    A(f"s_lshl_b32 {s(37)}, {s(sTT)}, 10")
    A(f"s_add_u32 {s(37)}, {s(37)}, {s(sT0)}")
    A(f"v_lshl_add_u32 {v(vMb)}, {v(vLane)}, 4, {s(37)}")
    A(f"s_lshl_b32 {s(37)}, {s(sTT)}, 8")
    A(f"s_add_u32 {s(37)}, {s(37)}, {s(sT1)}")
    A(f"v_lshl_add_u32 {v(vRb)}, {v(vLi)}, 3, {s(37)}")
    A(f"v_add_u32 {v(vC0)}, {s(sT3)}, {v(vHb)}")
    A("s_waitcnt lgkmcnt(0)")
    A(f"v_mul_f32 {v(M+1)}, {s(sT2)}, {v(M+1)}")
    A(f"v_mul_f32 {v(M+3)}, {s(sT2)}, {v(M+3)}")
    vH, vE, vA0 = t[5], t[6], t[7]
    vA1 = t[0]; vPk = M+4
    for g in range(4):
        A(f"v_add_u32 {v(vE)}, {2*g}, {v(vC0)}")
        A(f"v_mul_u32_u24 {v(vH)}, 205, {v(vE)}")
        A(f"v_lshrrev_b32 {v(vH)}, 10, {v(vH)}")
        A(f"v_mul_u32_u24 {v(vA0)}, 5, {v(vH)}")
        A(f"v_sub_u32 {v(vE)}, {v(vE)}, {v(vA0)}")
        A(f"v_lshl_add_u32 {v(vA0)}, {v(vH)}, 16, {v(vMb)}")
        A(f"v_lshrrev_b32 {v(t[1])}, 1, {v(vE)}")
        A(f"v_lshl_add_u32 {v(vA0)}, {v(t[1])}, 3, {v(vA0)}")
        A(f"v_lshl_add_u32 {v(vH)}, {v(vH)}, 14, {v(vRb)}")
        A(f"v_cmp_eq_u32 vcc, 4, {v(vE)}")
        A(f"v_add_u32 {v(vA1)}, 1024, {v(vA0)}")
        A(f"v_add_u32 {v(t[1])}, 256, {v(vH)}")
        A(f"v_cndmask_b32 {v(vA0)}, {v(vA0)}, {v(vH)}, vcc")
        A(f"v_cndmask_b32 {v(vA1)}, {v(vA1)}, {v(t[1])}, vcc")
        for ti in range(2):
            for r in range(4):
                x = acc[ti] + 4*g + r
                A(f"v_fma_f32 {v(x)}, -{v(M+2*ti)}, {v(P+4*g+r)}, {v(x)}")
            for r in range(4):
                x = acc[ti] + 4*g + r
                A(f"v_mul_f32 {v(x)}, {v(M+2*ti+1)}, {v(x)}")
            x = acc[ti] + 4*g
            A(f"v_cvt_pk_bf16_f32 {v(x)}, {v(x)}, {v(x+1)}")
            A(f"v_cvt_pk_bf16_f32 {v(x+1)}, {v(x+2)}, {v(x+3)}")
            A(f"buffer_store_dwordx2 {v(x,2)}, {v(vA0 if ti == 0 else vA1)}, {s(sWS,4)}, 0 offen {os.environ.get('ST1','')}")
    ST.finish(sWV, t[0] + (t[0] % 2))
    A("s_endpgm")
    ST.n = n0
    A.label(LV)
    mainloop(True, "v")
    ST.stamp()
    stats_exchange("v")
    ST.stamp()
    A(f"s_lshl_b32 {s(sT0)}, {s(sWC)}, 5")
    A(f"v_add_u32 {v(t[0])}, {s(sT0)}, {v(vLi)}")
    A(f"v_lshlrev_b32 {v(t[1])}, 2, {v(t[0])}")
    A(f"ds_read_b32 {v(vCs)}, {v(t[1])} offset:11264")
    A(f"s_sub_u32 {s(sT1)}, {s(sCG)}, 10")
    A(f"s_lshl_b32 {s(sT1)}, {s(sT1)}, 7")
    A(f"v_add_u32 {v(t[0])}, {s(sT1)}, {v(t[0])}")
    A(f"v_mul_u32_u24 {v(t[2])}, 3277, {v(t[0])}")
    A(f"v_lshrrev_b32 {v(t[2])}, 16, {v(t[2])}")
    A(f"v_mul_u32_u24 {v(t[3])}, 20, {v(t[2])}")
    A(f"v_sub_u32 {v(t[0])}, {v(t[0])}, {v(t[3])}")
    A(f"v_mul_u32_u24 {v(t[2])}, {128*640}, {v(t[2])}")
    A(f"v_lshl_add_u32 {v(t[2])}, {v(t[0])}, 4, {v(t[2])}")
    A(f"v_mul_u32_u24 {v(t[3])}, 320, {v(vHb)}")
    A(f"v_add_u32 {v(t[2])}, {v(t[2])}, {v(t[3])}")
    A(f"s_lshl_b32 {s(sT0)}, {s(sRB)}, 2")
    A(f"s_lshl_b32 {s(sT1)}, {s(sWR)}, 1")
    A(f"s_add_u32 {s(sT0)}, {s(sT0)}, {s(sT1)}")
    A(f"s_mul_i32 {s(sT0)}, {s(sT0)}, 1280")
    A(f"s_add_u32 {s(sT0)}, {s(sT0)}, {WS_VT:#x}")
    A(f"v_add_u32 {v(t[2])}, {s(sT0)}, {v(t[2])}")
    A(f"s_lshl_b32 {s(sT0)}, {s(sWR)}, 9")
    A(f"v_lshl_add_u32 {v(t[4])}, {v(vHb)}, 5, {s(sT0)}")
    P = Xf[0][0]
    for ti in range(2):
        for gh in range(2):
            for gg in range(2):
                g = gh*2 + gg
                A(f"ds_read_b128 {v(P+8*gg,4)}, {v(t[4])} offset:{10240+ti*256+g*64}")
                A(f"ds_read_b128 {v(P+8*gg+4,4)}, {v(t[4])} offset:{10240+ti*256+g*64+16}")
            A("s_waitcnt lgkmcnt(0)")
            for gg in range(2):
                g = gh*2 + gg
                for r in range(4):
                    x = acc[ti] + 4*g + r
                    A(f"v_fma_f32 {v(x)}, -{v(P+8*gg+2*r)}, {v(vCs)}, {v(x)}")
                for r in range(4):
                    x = acc[ti] + 4*g + r
                    A(f"v_mul_f32 {v(x)}, {v(P+8*gg+2*r+1)}, {v(x)}")
            x = acc[ti] + 8*gh
            for i in range(4):
                A(f"v_cvt_pk_bf16_f32 {v(x+i)}, {v(x+2*i)}, {v(x+2*i+1)}")
            A(f"buffer_store_dwordx4 {v(x,4)}, {v(t[2])}, {s(sWS,4)}, 0 offen offset:{ti*1280+gh*640} {os.environ.get('ST1','')}")
    ST.finish(sWV, t[0] + (t[0] % 2))
    A.label(END)
    A("s_endpgm")
    A.label(LIDLE)
    A("s_waitcnt vmcnt(0)")
    token_stats()
    A("s_waitcnt vmcnt(0)")
    A("s_barrier")
    Lq = A.newlabel(f"{name}_idl")
    A(f"s_cmp_eq_u32 {s(sWV)}, 0")
    A(f"s_cbranch_scc0 {Lq}")
    write_flag()
    A.label(Lq)
    A("s_endpgm")
    return A.text(), kernel_desc(name, R.hi), (256, 512, 131072 + 4096)
```

```python
from asmlib import *
KA_X, KA_WQKV, KA_WO, KA_BX, KA_W1, KA_W3, KA_W2, KA_OUT, KA_DBG, KA_WS = [8*i for i in range(10)]
T = 2048; D = 640; H = 32; DH = 20; F = 1728
WS_QM = 0x000000
WS_QR = 0x200000
WS_KM = 0x280000
WS_KR = 0x480000
WS_VT = 0x500000
WS_OM = 0x780000
WS_OR = 0x980000
WS_H  = 0xA00000
WS_G  = 0xC80000
WS_A2 = 0x1340000
WS_W13F = 0x1400000
WS_W2F = 0x1840000
WS_WOF = 0x1A60000
WS_CS  = 0x1B30000
WS_ST2 = 0x1B40000
WS_ST1 = 0x1B80000
WS_CSP = 0x1B90000
WS_SIZE = 0x1C00000
SZ_X = T*D*2; SZ_WQKV = D*3*D*2; SZ_WO = D*D*2; SZ_W1 = D*F*2; SZ_W2 = F*D*2; SZ_OUT = T*D*2
QSCALE = (DH ** -0.5) * 1.4426950408889634
EPS = 1e-5

def srd(A, sreg, ptr_sreg, size):
    A(f"s_mov_b32 {s(sreg)}, {s(ptr_sreg)}")
    A(f"s_and_b32 {s(sreg+1)}, {s(ptr_sreg+1)}, 0xffff")
    A(f"s_mov_b32 {s(sreg+2)}, {size:#x}")
    A(f"s_mov_b32 {s(sreg+3)}, 0x20000")

import os
STAMP = os.environ.get("STAMP", "0") == "1"
WS_STAMP = 0x1F00000
class Stamper:
    def __init__(self, A, wsptr, base=60):
        self.A = A; self.n = 0; self.base = base; self.ws = wsptr
    def stamp(self):
        if not STAMP: return
        if self.n == 0: self.A("s_memrealtime s[90:91]")
        self.A(f"s_memtime {s(self.base+2*self.n,2)}")
        self.A("s_waitcnt lgkmcnt(0)")
        self.n += 1
    def finish(self, sWV, vtmp, koff=0):
        if not STAMP: return
        A = self.A
        self.stamp()
        A("s_memrealtime s[92:93]")
        Stamper.cnt = getattr(Stamper, "cnt", 0) + 1
        L = f"stamp_skip_k{koff}_{Stamper.cnt}"
        A("s_waitcnt lgkmcnt(0) vmcnt(0)")
        A(f"s_cmp_eq_u32 {s(sWV)}, 0")
        A(f"s_cbranch_scc0 {L}")
        A(f"s_lshl_b32 s58, s2, 6")
        A(f"s_add_u32 s58, s58, {WS_STAMP + koff*0x10000:#x}")
        A(f"s_add_u32 s58, {s(self.ws)}, s58")
        A(f"s_addc_u32 s59, {s(self.ws+1)}, 0")
        A(f"v_mov_b32 {v(vtmp+1)}, 0")
        for i in range(self.n):
            if i == 0:
                A(f"v_mov_b32 {v(vtmp)}, {s(self.base)}")
            else:
                A(f"s_sub_u32 {s(self.base+2*i)}, {s(self.base+2*i)}, {s(self.base)}")
                A(f"v_mov_b32 {v(vtmp)}, {s(self.base+2*i)}")
            A(f"global_store_dword {v(vtmp+1)}, {v(vtmp)}, s[58:59] offset:{4*i}")
            A("s_nop 1")
        A("s_sub_u32 s92, s92, s90")
        A(f"v_mov_b32 {v(vtmp)}, s92")
        A(f"global_store_dword {v(vtmp+1)}, {v(vtmp)}, s[58:59] offset:60")
        A(f"v_mov_b32 {v(vtmp)}, s90")
        A(f"global_store_dword {v(vtmp+1)}, {v(vtmp)}, s[58:59] offset:56")
        A.label(L)


def rot_init(A, sPh, sIdx, nst, t0, t1):
    A(f"s_lshr_b32 {s(t0)}, s2, 3")
    A(f"s_and_b32 {s(t1)}, {s(t0)}, 7")
    A(f"s_lshl_b32 {s(t1)}, {s(t1)}, 2")
    A(f"s_lshr_b32 {s(t0)}, {s(t0)}, 3")
    A(f"s_mul_i32 {s(t0)}, {s(t0)}, 9")
    A(f"s_add_u32 {s(t0)}, {s(t0)}, {s(t1)}")
    A(f"s_and_b32 {s(t0)}, {s(t0)}, 31")
    A(f"s_mul_i32 {s(t0)}, {s(t0)}, {nst}")
    A(f"s_lshr_b32 {s(sPh)}, {s(t0)}, 5")
def rot_next(A, sPh, nst):
    A(f"s_add_u32 {s(sPh)}, {s(sPh)}, 1")
    A(f"s_cmp_eq_u32 {s(sPh)}, {nst}")
    A(f"s_cselect_b32 {s(sPh)}, 0, {s(sPh)}")


def touch_loop(A, name, items, sWS, vdst, scnt, stmp, maxfly=2):
    for k, (creg, cval, vaddr, srdreg, soff, mask) in enumerate(items):
        L = A.newlabel(f"{name}_t")
        if creg is not None:
            A(f"s_cmp_eq_u32 {s(creg)}, {cval}")
            A(f"s_cbranch_scc0 {L}")
        A(f"s_waitcnt vmcnt({maxfly-1})")
        A(f"s_mov_b32 {s(stmp)}, {soff:#x}")
        if mask: A(f"s_mov_b64 exec, {mask}")
        A(f"buffer_load_dword {v(vdst)}, {v(vaddr)}, {s(srdreg,4)}, {s(stmp)} offen")
        if mask: A(f"s_mov_b64 exec, -1")
        A.label(L)


def sched_seq(N, S, Ld=1):
    G = N // S
    assert G * S == N
    seq = [(S*g, 0) for g in range(min(Ld, G))]
    for g in range(G):
        if g + Ld < G: seq.append((S*(g+Ld), 0))
        for i in range(1, S): seq.append((S*g, i))
    assert len(seq) == N
    return seq
def sched_init(A, sU, S, t0, t1):
    A(f"s_lshr_b32 {s(t0)}, s2, 3")
    A(f"s_and_b32 {s(t1)}, {s(t0)}, 7")
    A(f"s_lshr_b32 {s(t0)}, {s(t0)}, 3")
    A(f"s_add_u32 {s(t0)}, {s(t0)}, {s(t1)}")
    if S & (S-1) == 0:
        A(f"s_and_b32 {s(sU)}, {s(t0)}, {S-1}")
    else:
        assert S == 3 or S == 5
        m = {3: 86, 5: 52}[S]
        A(f"s_mul_i32 {s(t1)}, {s(t0)}, {m}")
        A(f"s_lshr_b32 {s(t1)}, {s(t1)}, 8")
        A(f"s_mul_i32 {s(t1)}, {s(t1)}, {S}")
        A(f"s_sub_u32 {s(sU)}, {s(t0)}, {s(t1)}")
def sched_phys(A, sPh, sU, S, base, i):
    if i == 0:
        A(f"s_add_u32 {s(sPh)}, {s(sU)}, {base}")
    else:
        A(f"s_add_u32 {s(sPh)}, {s(sU)}, {i}")
        A(f"s_cmp_ge_u32 {s(sPh)}, {S}")
        A(f"s_cselect_b32 vcc_lo, {S}, 0")
        A(f"s_sub_u32 {s(sPh)}, {s(sPh)}, vcc_lo")
        if base: A(f"s_add_u32 {s(sPh)}, {s(sPh)}, {base}")


def code_touch(A, name, targets, sWV, vLane, vtmp, spair, stmp):
    if os.environ.get("NO_CTOUCH"): return
    L = A.newlabel(f"{name}_ct"); P = A.newlabel(f"{name}_pc")
    A(f"s_cmp_eq_u32 {s(sWV)}, 7")
    A(f"s_cbranch_scc0 {L}")
    first, last = targets
    A(f"s_getpc_b64 {s(spair,2)}")
    A.label(P)
    A(f"s_add_u32 {s(spair)}, {s(spair)}, {first}-{P}")
    A(f"s_addc_u32 {s(spair+1)}, {s(spair+1)}, 0")
    A(f"s_lshr_b32 {s(stmp)}, s2, 3")
    A(f"s_lshl_b32 {s(stmp)}, {s(stmp)}, 13")
    A(f"s_cmp_ge_u32 {s(stmp)}, {last}-{first}")
    A(f"s_cbranch_scc1 {L}")
    A(f"v_lshl_add_u32 {v(vtmp)}, {v(vLane)}, 7, {s(stmp)}")
    A(f"v_min_u32 {v(vtmp)}, {last}-{first}-4, {v(vtmp)}")
    A(f"global_load_dword {v(vtmp)}, {v(vtmp)}, {s(spair,2)}")
    A.label(L)
```

```python
from asmlib import *
KA_X, KA_WQKV, KA_WO, KA_BX, KA_W1, KA_W3, KA_W2, KA_OUT, KA_DBG, KA_WS = [8*i for i in range(10)]
T = 2048; D = 640; H = 32; DH = 20; F = 1728
WS_QM = 0x000000
WS_QR = 0x200000
WS_KM = 0x280000
WS_KR = 0x480000
WS_VT = 0x500000
WS_OM = 0x780000
WS_OR = 0x980000
WS_H  = 0xA00000
WS_G  = 0xC80000
WS_A2 = 0x1340000
WS_W13F = 0x1400000
WS_W2F = 0x1840000
WS_WOF = 0x1A60000
WS_CS  = 0x1B30000
WS_ST2 = 0x1B40000
WS_ST1 = 0x1B80000
WS_CSP = 0x1B90000
WS_SIZE = 0x1C00000
SZ_X = T*D*2; SZ_WQKV = D*3*D*2; SZ_WO = D*D*2; SZ_W1 = D*F*2; SZ_W2 = F*D*2; SZ_OUT = T*D*2
QSCALE = (DH ** -0.5) * 1.4426950408889634
EPS = 1e-5

def srd(A, sreg, ptr_sreg, size):
    A(f"s_mov_b32 {s(sreg)}, {s(ptr_sreg)}")
    A(f"s_and_b32 {s(sreg+1)}, {s(ptr_sreg+1)}, 0xffff")
    A(f"s_mov_b32 {s(sreg+2)}, {size:#x}")
    A(f"s_mov_b32 {s(sreg+3)}, 0x20000")

import os
STAMP = os.environ.get("STAMP", "0") == "1"
WS_STAMP = 0x1F00000
class Stamper:
    def __init__(self, A, wsptr, base=60):
        self.A = A; self.n = 0; self.base = base; self.ws = wsptr
    def stamp(self):
        if not STAMP: return
        if self.n == 0: self.A("s_memrealtime s[90:91]")
        self.A(f"s_memtime {s(self.base+2*self.n,2)}")
        self.A("s_waitcnt lgkmcnt(0)")
        self.n += 1
    def finish(self, sWV, vtmp, koff=0):
        if not STAMP: return
        A = self.A
        self.stamp()
        A("s_memrealtime s[92:93]")
        Stamper.cnt = getattr(Stamper, "cnt", 0) + 1
        L = f"stamp_skip_k{koff}_{Stamper.cnt}"
        A("s_waitcnt lgkmcnt(0) vmcnt(0)")
        A(f"s_cmp_eq_u32 {s(sWV)}, 0")
        A(f"s_cbranch_scc0 {L}")
        A(f"s_lshl_b32 s58, s2, 6")
        A(f"s_add_u32 s58, s58, {WS_STAMP + koff*0x10000:#x}")
        A(f"s_add_u32 s58, {s(self.ws)}, s58")
        A(f"s_addc_u32 s59, {s(self.ws+1)}, 0")
        A(f"v_mov_b32 {v(vtmp+1)}, 0")
        for i in range(self.n):
            if i == 0:
                A(f"v_mov_b32 {v(vtmp)}, {s(self.base)}")
            else:
                A(f"s_sub_u32 {s(self.base+2*i)}, {s(self.base+2*i)}, {s(self.base)}")
                A(f"v_mov_b32 {v(vtmp)}, {s(self.base+2*i)}")
            A(f"global_store_dword {v(vtmp+1)}, {v(vtmp)}, s[58:59] offset:{4*i}")
            A("s_nop 1")
        A("s_sub_u32 s92, s92, s90")
        A(f"v_mov_b32 {v(vtmp)}, s92")
        A(f"global_store_dword {v(vtmp+1)}, {v(vtmp)}, s[58:59] offset:60")
        A(f"v_mov_b32 {v(vtmp)}, s90")
        A(f"global_store_dword {v(vtmp+1)}, {v(vtmp)}, s[58:59] offset:56")
        A.label(L)


def rot_init(A, sPh, sIdx, nst, t0, t1):
    A(f"s_lshr_b32 {s(t0)}, s2, 3")
    A(f"s_and_b32 {s(t1)}, {s(t0)}, 7")
    A(f"s_lshl_b32 {s(t1)}, {s(t1)}, 2")
    A(f"s_lshr_b32 {s(t0)}, {s(t0)}, 3")
    A(f"s_mul_i32 {s(t0)}, {s(t0)}, 9")
    A(f"s_add_u32 {s(t0)}, {s(t0)}, {s(t1)}")
    A(f"s_and_b32 {s(t0)}, {s(t0)}, 31")
    A(f"s_mul_i32 {s(t0)}, {s(t0)}, {nst}")
    A(f"s_lshr_b32 {s(sPh)}, {s(t0)}, 5")
def rot_next(A, sPh, nst):
    A(f"s_add_u32 {s(sPh)}, {s(sPh)}, 1")
    A(f"s_cmp_eq_u32 {s(sPh)}, {nst}")
    A(f"s_cselect_b32 {s(sPh)}, 0, {s(sPh)}")


def touch_loop(A, name, items, sWS, vdst, scnt, stmp, maxfly=2):
    for k, (creg, cval, vaddr, srdreg, soff, mask) in enumerate(items):
        L = A.newlabel(f"{name}_t")
        if creg is not None:
            A(f"s_cmp_eq_u32 {s(creg)}, {cval}")
            A(f"s_cbranch_scc0 {L}")
        A(f"s_waitcnt vmcnt({maxfly-1})")
        A(f"s_mov_b32 {s(stmp)}, {soff:#x}")
        if mask: A(f"s_mov_b64 exec, {mask}")
        A(f"buffer_load_dword {v(vdst)}, {v(vaddr)}, {s(srdreg,4)}, {s(stmp)} offen")
        if mask: A(f"s_mov_b64 exec, -1")
        A.label(L)


def sched_seq(N, S, Ld=1):
    G = N // S
    assert G * S == N
    mode = os.environ.get("SCHED", "0")
    if mode == "1":
        return [(i, None) for i in range(S)] + [(S*g, i) for g in range(1, G) for i in range(S)]
    if mode == "2":
        rest = [(S*g, i) for g in range(G) for i in range(S)]
        return [(i, None) for i in range(S)] + [(S*g, i) for g in range(1, G) for i in range(S)] if False else [(0, None)] + [(0, i) for i in range(1, S)] and _seq2(N, S)
    seq = [(S*g, 0) for g in range(min(Ld, G))]
    for g in range(G):
        if g + Ld < G: seq.append((S*(g+Ld), 0))
        for i in range(1, S): seq.append((S*g, i))
    assert len(seq) == N
    return seq
def _seq2(N, S):
    return [(i, None) for i in range(S)] + [(S*g, i) for g in range(1, N//S) for i in range(S)]
def sched_init(A, sU, S, t0, t1):
    A(f"s_lshr_b32 {s(t0)}, s2, 3")
    A(f"s_and_b32 {s(t1)}, {s(t0)}, 7")
    A(f"s_lshr_b32 {s(t0)}, {s(t0)}, 3")
    A(f"s_add_u32 {s(t0)}, {s(t0)}, {s(t1)}")
    if S & (S-1) == 0:
        A(f"s_and_b32 {s(sU)}, {s(t0)}, {S-1}")
    else:
        assert S == 3 or S == 5
        m = {3: 86, 5: 52}[S]
        A(f"s_mul_i32 {s(t1)}, {s(t0)}, {m}")
        A(f"s_lshr_b32 {s(t1)}, {s(t1)}, 8")
        A(f"s_mul_i32 {s(t1)}, {s(t1)}, {S}")
        A(f"s_sub_u32 {s(sU)}, {s(t0)}, {s(t1)}")
def sched_phys(A, sPh, sU, S, base, i):
    if i is None:
        A(f"s_mov_b32 {s(sPh)}, {base}")
    elif i == 0:
        A(f"s_add_u32 {s(sPh)}, {s(sU)}, {base}")
    else:
        A(f"s_add_u32 {s(sPh)}, {s(sU)}, {i}")
        A(f"s_cmp_ge_u32 {s(sPh)}, {S}")
        A(f"s_cselect_b32 vcc_lo, {S}, 0")
        A(f"s_sub_u32 {s(sPh)}, {s(sPh)}, vcc_lo")
        if base: A(f"s_add_u32 {s(sPh)}, {s(sPh)}, {base}")


def code_touch(A, name, targets, sWV, vLane, vtmp, spair, stmp):
    if os.environ.get("NO_CTOUCH") or os.environ.get("ONLY12") and name.startswith("p2"): return
    L = A.newlabel(f"{name}_ct"); P = A.newlabel(f"{name}_pc")
    A(f"s_cmp_eq_u32 {s(sWV)}, 7")
    A(f"s_cbranch_scc0 {L}")
    first, last = targets
    A(f"s_getpc_b64 {s(spair,2)}")
    A.label(P)
    A(f"s_add_u32 {s(spair)}, {s(spair)}, {first}-{P}")
    A(f"s_addc_u32 {s(spair+1)}, {s(spair+1)}, 0")
    A(f"s_lshr_b32 {s(stmp)}, s2, 3")
    A(f"s_lshl_b32 {s(stmp)}, {s(stmp)}, 13")
    A(f"s_cmp_ge_u32 {s(stmp)}, {last}-{first}")
    A(f"s_cbranch_scc1 {L}")
    A(f"v_lshl_add_u32 {v(vtmp)}, {v(vLane)}, 7, {s(stmp)}")
    A(f"v_min_u32 {v(vtmp)}, {last}-{first}-4, {v(vtmp)}")
    A(f"global_load_dword {v(vtmp)}, {v(vtmp)}, {s(spair,2)}")
    A.label(L)
```

```python
from asmlib import *
KA_X, KA_WQKV, KA_WO, KA_BX, KA_W1, KA_W3, KA_W2, KA_OUT, KA_DBG, KA_WS = [8*i for i in range(10)]
T = 2048; D = 640; H = 32; DH = 20; F = 1728
WS_QM = 0x000000
WS_QR = 0x200000
WS_KM = 0x280000
WS_KR = 0x480000
WS_VT = 0x500000
WS_OM = 0x780000
WS_OR = 0x980000
WS_H  = 0xA00000
WS_G  = 0xC80000
WS_A2 = 0x1340000
WS_W13F = 0x1400000
WS_W2F = 0x1840000
WS_WOF = 0x1A60000
WS_CS  = 0x1B30000
WS_ST2 = 0x1B40000
WS_ST1 = 0x1B80000
WS_CSP = 0x1B90000
WS_FLG2 = 0x1BC0000
WS_FLG3 = 0x1BC8000
WS_FLG4 = 0x1BD0000
WS_CNTRP = 0x1BD8000
WS_SIZE = 0x1C00000
SZ_X = T*D*2; SZ_WQKV = D*3*D*2; SZ_WO = D*D*2; SZ_W1 = D*F*2; SZ_W2 = F*D*2; SZ_OUT = T*D*2
QSCALE = (DH ** -0.5) * 1.4426950408889634
EPS = 1e-5

def srd(A, sreg, ptr_sreg, size):
    A(f"s_mov_b32 {s(sreg)}, {s(ptr_sreg)}")
    A(f"s_and_b32 {s(sreg+1)}, {s(ptr_sreg+1)}, 0xffff")
    A(f"s_mov_b32 {s(sreg+2)}, {size:#x}")
    A(f"s_mov_b32 {s(sreg+3)}, 0x20000")

import os
STAMP = os.environ.get("STAMP", "0") == "1"
WS_STAMP = 0x1F00000
class Stamper:
    def __init__(self, A, wsptr, base=60):
        self.A = A; self.n = 0; self.base = base; self.ws = wsptr
    def stamp(self):
        if not STAMP: return
        if self.n == 0: self.A("s_memrealtime s[90:91]")
        self.A(f"s_memtime {s(self.base+2*self.n,2)}")
        self.A("s_waitcnt lgkmcnt(0)")
        self.n += 1
    def finish(self, sWV, vtmp, koff=0):
        if not STAMP: return
        A = self.A
        self.stamp()
        A("s_memrealtime s[92:93]")
        Stamper.cnt = getattr(Stamper, "cnt", 0) + 1
        L = f"stamp_skip_k{koff}_{Stamper.cnt}"
        A("s_waitcnt lgkmcnt(0) vmcnt(0)")
        A(f"s_cmp_eq_u32 {s(sWV)}, 0")
        A(f"s_cbranch_scc0 {L}")
        A(f"s_lshl_b32 s58, s2, 6")
        A(f"s_add_u32 s58, s58, {WS_STAMP + koff*0x10000:#x}")
        A(f"s_add_u32 s58, {s(self.ws)}, s58")
        A(f"s_addc_u32 s59, {s(self.ws+1)}, 0")
        A(f"v_mov_b32 {v(vtmp+1)}, 0")
        for i in range(self.n):
            if i == 0:
                A(f"v_mov_b32 {v(vtmp)}, {s(self.base)}")
            else:
                A(f"s_sub_u32 {s(self.base+2*i)}, {s(self.base+2*i)}, {s(self.base)}")
                A(f"v_mov_b32 {v(vtmp)}, {s(self.base+2*i)}")
            A(f"global_store_dword {v(vtmp+1)}, {v(vtmp)}, s[58:59] offset:{4*i}")
            A("s_nop 1")
        A("s_sub_u32 s92, s92, s90")
        A(f"v_mov_b32 {v(vtmp)}, s92")
        A(f"global_store_dword {v(vtmp+1)}, {v(vtmp)}, s[58:59] offset:60")
        A(f"v_mov_b32 {v(vtmp)}, s90")
        A(f"global_store_dword {v(vtmp+1)}, {v(vtmp)}, s[58:59] offset:56")
        A.label(L)


def rot_init(A, sPh, sIdx, nst, t0, t1):
    A(f"s_lshr_b32 {s(t0)}, s2, 3")
    A(f"s_and_b32 {s(t1)}, {s(t0)}, 7")
    A(f"s_lshl_b32 {s(t1)}, {s(t1)}, 2")
    A(f"s_lshr_b32 {s(t0)}, {s(t0)}, 3")
    A(f"s_mul_i32 {s(t0)}, {s(t0)}, 9")
    A(f"s_add_u32 {s(t0)}, {s(t0)}, {s(t1)}")
    A(f"s_and_b32 {s(t0)}, {s(t0)}, 31")
    A(f"s_mul_i32 {s(t0)}, {s(t0)}, {nst}")
    A(f"s_lshr_b32 {s(sPh)}, {s(t0)}, 5")
def rot_next(A, sPh, nst):
    A(f"s_add_u32 {s(sPh)}, {s(sPh)}, 1")
    A(f"s_cmp_eq_u32 {s(sPh)}, {nst}")
    A(f"s_cselect_b32 {s(sPh)}, 0, {s(sPh)}")


def touch_loop(A, name, items, sWS, vdst, scnt, stmp, maxfly=2):
    for k, (creg, cval, vaddr, srdreg, soff, mask) in enumerate(items):
        L = A.newlabel(f"{name}_t")
        if creg is not None:
            A(f"s_cmp_eq_u32 {s(creg)}, {cval}")
            A(f"s_cbranch_scc0 {L}")
        A(f"s_waitcnt vmcnt({maxfly-1})")
        A(f"s_mov_b32 {s(stmp)}, {soff:#x}")
        if mask: A(f"s_mov_b64 exec, {mask}")
        A(f"buffer_load_dword {v(vdst)}, {v(vaddr)}, {s(srdreg,4)}, {s(stmp)} offen")
        if mask: A(f"s_mov_b64 exec, -1")
        A.label(L)


def sched_seq(N, S, Ld=1):
    G = N // S
    assert G * S == N
    mode = os.environ.get("SCHED", "0")
    if mode == "1":
        return [(i, None) for i in range(S)] + [(S*g, i) for g in range(1, G) for i in range(S)]
    if mode == "2":
        rest = [(S*g, i) for g in range(G) for i in range(S)]
        return [(i, None) for i in range(S)] + [(S*g, i) for g in range(1, G) for i in range(S)] if False else [(0, None)] + [(0, i) for i in range(1, S)] and _seq2(N, S)
    seq = [(S*g, 0) for g in range(min(Ld, G))]
    for g in range(G):
        if g + Ld < G: seq.append((S*(g+Ld), 0))
        for i in range(1, S): seq.append((S*g, i))
    assert len(seq) == N
    return seq
def _seq2(N, S):
    return [(i, None) for i in range(S)] + [(S*g, i) for g in range(1, N//S) for i in range(S)]
def sched_init(A, sU, S, t0, t1):
    A(f"s_lshr_b32 {s(t0)}, s2, 3")
    A(f"s_and_b32 {s(t1)}, {s(t0)}, 7")
    A(f"s_lshr_b32 {s(t0)}, {s(t0)}, 3")
    A(f"s_add_u32 {s(t0)}, {s(t0)}, {s(t1)}")
    if S & (S-1) == 0:
        A(f"s_and_b32 {s(sU)}, {s(t0)}, {S-1}")
    else:
        assert S == 3 or S == 5
        m = {3: 86, 5: 52}[S]
        A(f"s_mul_i32 {s(t1)}, {s(t0)}, {m}")
        A(f"s_lshr_b32 {s(t1)}, {s(t1)}, 8")
        A(f"s_mul_i32 {s(t1)}, {s(t1)}, {S}")
        A(f"s_sub_u32 {s(sU)}, {s(t0)}, {s(t1)}")
def sched_phys(A, sPh, sU, S, base, i):
    if i is None:
        A(f"s_mov_b32 {s(sPh)}, {base}")
    elif i == 0:
        A(f"s_add_u32 {s(sPh)}, {s(sU)}, {base}")
    else:
        A(f"s_add_u32 {s(sPh)}, {s(sU)}, {i}")
        A(f"s_cmp_ge_u32 {s(sPh)}, {S}")
        A(f"s_cselect_b32 vcc_lo, {S}, 0")
        A(f"s_sub_u32 {s(sPh)}, {s(sPh)}, vcc_lo")
        if base: A(f"s_add_u32 {s(sPh)}, {s(sPh)}, {base}")


def code_touch(A, name, targets, sWV, vLane, vtmp, spair, stmp):
    if os.environ.get("NO_CTOUCH") or os.environ.get("ONLY12") and name.startswith("p2"): return
    L = A.newlabel(f"{name}_ct"); P = A.newlabel(f"{name}_pc")
    A(f"s_cmp_eq_u32 {s(sWV)}, 7")
    A(f"s_cbranch_scc0 {L}")
    first, last = targets
    A(f"s_getpc_b64 {s(spair,2)}")
    A.label(P)
    A(f"s_add_u32 {s(spair)}, {s(spair)}, {first}-{P}")
    A(f"s_addc_u32 {s(spair+1)}, {s(spair+1)}, 0")
    A(f"s_lshr_b32 {s(stmp)}, s2, 3")
    A(f"s_lshl_b32 {s(stmp)}, {s(stmp)}, 13")
    A(f"s_cmp_ge_u32 {s(stmp)}, {last}-{first}")
    A(f"s_cbranch_scc1 {L}")
    A(f"v_lshl_add_u32 {v(vtmp)}, {v(vLane)}, 7, {s(stmp)}")
    A(f"v_min_u32 {v(vtmp)}, {last}-{first}-4, {v(vtmp)}")
    A(f"global_load_dword {v(vtmp)}, {v(vtmp)}, {s(spair,2)}")
    A.label(L)


MERGED = os.environ.get("MERGED", "0") == "1"
SC = " sc1" if MERGED else ""

def mg_publish(A, name, sWS, sWV, sId, base, vt0, vt1, stmp):
    L = A.newlabel(f"{name}_pub")
    A("s_waitcnt vmcnt(0)")
    A("s_barrier")
    A(f"s_cmp_eq_u32 {s(sWV)}, 0")
    A(f"s_cbranch_scc0 {L}")
    A(f"s_lshl_b32 {s(stmp)}, {s(sId)}, 7")
    A(f"s_add_u32 {s(stmp)}, {s(stmp)}, {base:#x}")
    A(f"v_mov_b32 {v(vt0)}, 0")
    A(f"v_mov_b32 {v(vt1)}, 1")
    A(f"s_mov_b64 exec, 1")
    A(f"buffer_store_dword {v(vt1)}, {v(vt0)}, {s(sWS,4)}, {s(stmp)} offen sc1")
    A(f"s_mov_b64 exec, -1")
    A.label(L)

def mg_wait(A, name, sWS, sWV, vAddr, vExp, vVal, mask, scnt):
    L = A.newlabel(f"{name}_wd"); Lp = A.newlabel(f"{name}_wp")
    A(f"s_cmp_eq_u32 {s(sWV)}, 0")
    A(f"s_cbranch_scc0 {L}")
    A(f"s_mov_b32 {s(scnt)}, 0")
    A(f"s_mov_b64 exec, {mask}")
    A.label(Lp)
    A(f"buffer_load_dword {v(vVal)}, {v(vAddr)}, {s(sWS,4)}, 0 offen sc1")
    A("s_waitcnt vmcnt(0)")
    A(f"v_cmp_eq_u32 vcc, {v(vVal)}, {v(vExp)}")
    A(f"s_cmp_eq_u64 vcc, exec")
    A(f"s_cbranch_scc1 {L}_ok")
    A("s_sleep 1")
    A(f"s_add_u32 {s(scnt)}, {s(scnt)}, 1")
    A(f"s_cmp_lt_u32 {s(scnt)}, 0x100000")
    A(f"s_cbranch_scc1 {Lp}")
    A.label(f"{L}_ok")
    A(f"s_mov_b64 exec, -1")
    A.label(L)
    A("s_barrier")
```

```python
from common import *
import os

def gen_p1(name="p1_qkv_kernel"):
    A = Asm()
    A.raw(kernel_header(name))
    END = f"{name}_END"
    sX, sW, sWS = 8, 12, 16
    sRB, sCG, sWV, sWR, sWC, sM, sXo, sWo = 20, 21, 22, 23, 28, 29, 30, 31
    sT0, sT1, sT2, sT3 = 32, 33, 34, 35
    sPh = 38
    ST = Stamper(A, 24)
    ST.stamp()
    A(f"s_cmp_ge_u32 s2, 256")
    A(f"s_cbranch_scc1 {END}")
    A(f"s_load_dwordx4 s[4:7], s[0:1], {KA_X}")
    A(f"s_load_dwordx2 s[24:25], s[0:1], {KA_WS}")
    A(f"s_and_b32 {s(sT0)}, s2, 7")
    A(f"s_lshr_b32 {s(sT1)}, s2, 3")
    A(f"s_lshr_b32 {s(sT2)}, {s(sT0)}, 2")
    A(f"s_lshl_b32 {s(sT2)}, {s(sT2)}, 3")
    A(f"s_and_b32 {s(sT3)}, {s(sT1)}, 7")
    A(f"s_add_u32 {s(sRB)}, {s(sT2)}, {s(sT3)}")
    A(f"s_and_b32 {s(sT2)}, {s(sT0)}, 3")
    A(f"s_lshl_b32 {s(sT2)}, {s(sT2)}, 2")
    A(f"s_lshr_b32 {s(sT3)}, {s(sT1)}, 3")
    A(f"s_add_u32 {s(sCG)}, {s(sT2)}, {s(sT3)}")
    A(f"s_load_dwordx2 s[26:27], s[0:1], {KA_DBG}")
    R = Regs(1, 128)
    vLane = R.alloc(); vLi = R.alloc(); vHb = R.alloc()
    vX0 = R.alloc(); vX1 = R.alloc(); vW0 = R.alloc(); vW1 = R.alloc()
    vXA = R.alloc(4, 1); vXB = R.alloc(4, 1); vWA = R.alloc(); vWB = R.alloc()
    vOne = R.alloc()
    vSt = R.alloc(4, 2)
    vCs = R.alloc()
    LA = R.alloc(6, 2); LB = R.alloc(6, 2)
    vFl = R.alloc(); vNeed = R.alloc(); SL = R.alloc(6, 2)
    sDB = 40; sOK = 44; sSb = 45; sCb = 46
    STX = 131072
    t = [R.alloc() for _ in range(8)]
    acc = [R.alloc(16, 4), R.alloc(16, 4)]
    Xf = [[R.alloc(4, 4), R.alloc(4, 4)] for _ in range(2)]
    Wf = [R.alloc(4, 4) for _ in range(2)]
    A(f"v_lshrrev_b32 {v(t[0])}, 6, v0")
    A(f"v_and_b32 {v(vLane)}, 63, v0")
    A(f"v_readfirstlane_b32 {s(sWV)}, {v(t[0])}")
    A(f"v_and_b32 {v(vLi)}, 31, {v(vLane)}")
    A(f"v_lshrrev_b32 {v(vHb)}, 5, {v(vLane)}")
    A(f"s_lshr_b32 {s(sWR)}, {s(sWV)}, 2")
    A(f"s_and_b32 {s(sWC)}, {s(sWV)}, 3")
    A(f"s_lshl_b32 {s(sM)}, {s(sWV)}, 11")
    code_touch(A, name, ("p2_kernel", "p2_kernel_CODE_END"), sWV, vLane, R.alloc(), 50, 52)
    A(f"s_lshl_b32 {s(sT0)}, {s(sRB)}, 7")
    A(f"s_lshl_b32 {s(sT1)}, {s(sWV)}, 4")
    A(f"s_add_u32 {s(sT0)}, {s(sT0)}, {s(sT1)}")
    A(f"v_lshrrev_b32 {v(t[0])}, 3, {v(vLane)}")
    A(f"v_add_u32 {v(t[0])}, {s(sT0)}, {v(t[0])}")
    A(f"v_mul_u32_u24 {v(t[0])}, 1280, {v(t[0])}")
    A(f"v_and_b32 {v(t[1])}, 7, {v(vLane)}")
    A(f"v_lshrrev_b32 {v(t[2])}, 4, {v(vLane)}")
    A(f"v_xor_b32 {v(t[1])}, {v(t[1])}, {v(t[2])}")
    A(f"v_lshl_add_u32 {v(vX0)}, {v(t[1])}, 4, {v(t[0])}")
    A(f"v_xor_b32 {v(t[1])}, 4, {v(t[1])}")
    A(f"v_lshl_add_u32 {v(vX1)}, {v(t[1])}, 4, {v(t[0])}")
    A(f"v_add_u32 {v(vX1)}, 10240, {v(vX1)}")
    A(f"s_lshl_b32 {s(sT1)}, {s(sWV)}, 3")
    A(f"v_add_u32 {v(t[0])}, {s(sT1)}, {v(t[2])}")
    A(f"v_mul_u32_u24 {v(t[0])}, 3840, {v(t[0])}")
    A(f"s_lshl_b32 {s(sT2)}, {s(sCG)}, 8")
    A(f"v_add_u32 {v(t[0])}, {s(sT2)}, {v(t[0])}")
    A(f"v_bfe_u32 {v(t[1])}, {v(vLane)}, 2, 2")
    A(f"v_xor_b32 {v(t[1])}, {v(t[1])}, {v(t[2])}")
    A(f"v_lshl_add_u32 {v(t[0])}, {v(t[1])}, 6, {v(t[0])}")
    A(f"v_and_b32 {v(t[1])}, 3, {v(vLane)}")
    A(f"v_lshl_add_u32 {v(vW0)}, {v(t[1])}, 4, {v(t[0])}")
    A(f"v_add_u32 {v(vW1)}, 15360, {v(vW0)}")
    A("s_waitcnt lgkmcnt(0)")
    srd(A, sX, 4, SZ_X); srd(A, sW, 6, SZ_WQKV); srd(A, sWS, 24, WS_SIZE); srd(A, sDB, 26, 256)
    if MERGED:
        Lz = A.newlabel(f"{name}_zf")
        A(f"s_cmp_eq_u32 {s(sWV)}, 1")
        A(f"s_cbranch_scc0 {Lz}")
        A(f"v_lshlrev_b32 {v(t[0])}, 15, {v(vLane)}")
        A(f"s_lshl_b32 {s(sT0)}, s2, 7")
        A(f"s_add_u32 {s(sT0)}, {s(sT0)}, {WS_FLG2:#x}")
        A(f"v_mov_b32 {v(t[1])}, 0")
        A(f"s_mov_b64 exec, 0xf")
        A(f"buffer_store_dword {v(t[1])}, {v(t[0])}, {s(sWS,4)}, {s(sT0)} offen")
        A(f"s_mov_b64 exec, -1")
        A.label(Lz)
    A(f"s_lshl_b32 {s(sT0)}, {s(sRB)}, 7")
    A(f"s_lshl_b32 {s(sT1)}, {s(sCG)}, 3")
    A(f"s_add_u32 {s(sT0)}, {s(sT0)}, {s(sT1)}")
    A(f"s_add_u32 s47, {s(sT0)}, {s(sWV)}")
    A(f"s_mul_i32 {s(sT1)}, s47, 1280")
    A(f"v_lshlrev_b32 {v(vFl)}, 2, {v(vLane)}")
    for i in range(5): A(f"buffer_load_dword {v(LA+i)}, {v(vFl)}, {s(sX,4)}, {s(sT1)} offen offset:{256*i}")
    LIDLE = f"{name}_idle"
    A(f"s_mul_i32 {s(sT1)}, {s(sRB)}, 40")
    A(f"s_mul_i32 {s(sT2)}, {s(sWV)}, 5")
    A(f"s_add_u32 {s(sT1)}, {s(sT1)}, {s(sT2)}")
    A(f"s_mul_i32 {s(sT1)}, {s(sT1)}, 3840")
    A(f"s_lshl_b32 {s(sT2)}, {s(sCG)}, 8")
    A(f"s_add_u32 {s(sT1)}, {s(sT1)}, {s(sT2)}")
    A(f"s_cmp_ge_u32 {s(sCG)}, 15")
    A(f"s_cbranch_scc1 {LIDLE}")
    for i in range(5):
        A(f"buffer_load_dword {v(LB+i)}, {v(vFl)}, {s(sW,4)}, {s(sT1)} offen")
        A(f"s_add_u32 {s(sT1)}, {s(sT1)}, 3840")
    def token_stats():
        A(f"v_mov_b32 {v(vOne)}, 0x3f803f80")
        A(f"v_mov_b32 {v(vSt)}, 0"); A(f"v_mov_b32 {v(vSt+1)}, 0")
        A("s_nop 1")
        for i in range(5):
            A(f"v_dot2c_f32_bf16 {v(vSt)}, {v(LA+i)}, {v(vOne)}")
            A(f"v_dot2c_f32_bf16 {v(vSt+1)}, {v(LA+i)}, {v(LA+i)}")
        A("s_nop 2")
        for ror in (8, 4, 2, 1):
            A(f"v_add_f32_dpp {v(vSt)}, {v(vSt)}, {v(vSt)} row_ror:{ror} row_mask:0xf bank_mask:0xf")
            A(f"v_add_f32_dpp {v(vSt+1)}, {v(vSt+1)}, {v(vSt+1)} row_ror:{ror} row_mask:0xf bank_mask:0xf")
            A("s_nop 0")
        for sw in ("v_permlane16_swap_b32", "v_permlane32_swap_b32"):
            for c_ in range(2):
                A(f"v_mov_b32 {v(vSt+2)}, {v(vSt+c_)}")
                A(f"v_mov_b32 {v(vSt+3)}, {v(vSt+c_)}")
                A("s_nop 1")
                A(f"{sw} {v(vSt+2)}, {v(vSt+3)}")
                A(f"v_add_f32 {v(vSt+c_)}, {v(vSt+2)}, {v(vSt+3)}")
        A(f"v_mul_f32 {v(vSt)}, {f32bits(1.0/D):#x}, {v(vSt)}")
        A(f"v_mul_f32 {v(vSt+1)}, {f32bits(1.0/D):#x}, {v(vSt+1)}")
        A(f"v_fma_f32 {v(vSt+1)}, -{v(vSt)}, {v(vSt)}, {v(vSt+1)}")
        A(f"v_max_f32 {v(vSt+1)}, 0, {v(vSt+1)}")
        A(f"v_add_f32 {v(vSt+1)}, {f32bits(EPS):#x}, {v(vSt+1)}")
        A(f"v_rsq_f32 {v(vSt+1)}, {v(vSt+1)}")
        A(f"s_lshl_b32 {s(sT0)}, s47, 3")
        A(f"s_add_u32 {s(sT0)}, {s(sT0)}, {WS_ST1:#x}")
        A(f"v_mov_b32 {v(vSt+2)}, 0")
        A(f"s_mov_b64 exec, 1")
        A(f"buffer_store_dwordx2 {v(vSt,2)}, {v(vSt+2)}, {s(sWS,4)}, {s(sT0)} offen sc1")
        A(f"s_mov_b64 exec, -1")
    def write_flag():
        A(f"s_lshl_b32 {s(sT0)}, {s(sRB)}, 4")
        A(f"s_add_u32 {s(sT0)}, {s(sT0)}, {s(sCG)}")
        A(f"v_mov_b32 {v(t[6])}, 0")
        A(f"v_mov_b32 {v(t[7])}, 1")
        A(f"s_mov_b64 exec, 1")
        A(f"buffer_store_byte {v(t[7])}, {v(t[6])}, {s(sDB,4)}, {s(sT0)} offen sc1")
        A(f"s_mov_b64 exec, -1")
    SS = int(os.environ.get("S1", 5))
    seq = sched_seq(10, SS, int(os.environ.get("LD", 1)))
    sU = 39
    sched_init(A, sU, SS, sT0, sT1)
    def dma(st):
        base = (st % 4) * 32768
        sched_phys(A, sPh, sU, SS, *seq[st])
        A(f"s_lshl_b32 {s(sXo)}, {s(sPh)}, 7")
        A(f"s_add_u32 m0, {s(sM)}, {base}")
        A(f"s_mul_i32 {s(sWo)}, {s(sPh)}, {64*3840}")
        A(f"buffer_load_dwordx4 {v(vX0)}, {s(sX,4)}, {s(sXo)} offen lds")
        A(f"s_add_u32 m0, {s(sM)}, {base+1024}")
        A("s_nop 0")
        A(f"buffer_load_dwordx4 {v(vX1)}, {s(sX,4)}, {s(sXo)} offen lds")
        A(f"s_add_u32 m0, {s(sM)}, {base+16384}")
        A("s_nop 0")
        A(f"buffer_load_dwordx4 {v(vW0)}, {s(sW,4)}, {s(sWo)} offen lds")
        A(f"s_add_u32 m0, {s(sM)}, {base+16384+1024}")
        A("s_nop 0")
        A(f"buffer_load_dwordx4 {v(vW1)}, {s(sW,4)}, {s(sWo)} offen lds")
    ST.stamp()
    DIST = int(os.environ.get('P1_DIST', 2))
    for st in range(DIST): dma(st)
    A(f"s_waitcnt vmcnt({4*DIST})")
    token_stats()
    A(f"v_mov_b32 {v(SL)}, 0"); A(f"v_mov_b32 {v(SL+1)}, 0")
    for i in range(5):
        A(f"v_lshlrev_b32 {v(SL+2)}, 16, {v(LB+i)}")
        A(f"v_and_b32 {v(SL+3)}, 0xffff0000, {v(LB+i)}")
        A(f"v_add_f32 {v(SL)}, {v(SL)}, {v(SL+2)}")
        A(f"v_add_f32 {v(SL+1)}, {v(SL+1)}, {v(SL+3)}")
    A(f"s_lshl_b32 {s(sT0)}, {s(sWV)}, 9")
    A(f"s_add_u32 {s(sT0)}, {s(sT0)}, {STX}")
    A(f"v_lshl_add_u32 {v(SL+2)}, {v(vLane)}, 3, {s(sT0)}")
    A(f"ds_write_b64 {v(SL+2)}, {v(SL,2)}")
    A(f"v_lshrrev_b32 {v(t[6])}, 2, {v(vLane)}")
    A(f"v_cmp_eq_u32 vcc, {s(sRB)}, {v(t[6])}")
    A(f"v_mov_b32 {v(t[7])}, 0x01010101")
    A("s_nop 0")
    A(f"v_cndmask_b32 {v(vNeed)}, 0, {v(t[7])}, vcc")
    A(f"s_lshr_b32 {s(sT0)}, {s(sCG)}, 2")
    A(f"v_and_b32 {v(t[6])}, 3, {v(vLane)}")
    A(f"v_cmp_eq_u32 vcc, {s(sT0)}, {v(t[6])}")
    A(f"s_and_b32 {s(sT0)}, {s(sCG)}, 3")
    A(f"s_lshl_b32 {s(sT0)}, {s(sT0)}, 3")
    A(f"s_lshl_b32 {s(sT0)}, 1, {s(sT0)}")
    A(f"v_mov_b32 {v(t[7])}, {s(sT0)}")
    A(f"v_cndmask_b32 {v(t[7])}, 0, {v(t[7])}, vcc")
    A(f"v_or_b32 {v(vNeed)}, {v(vNeed)}, {v(t[7])}")
    A("s_waitcnt lgkmcnt(0)")
    A(f"s_lshl_b32 {s(sT0)}, {s(sWR)}, 6")
    A(f"v_add_u32 {v(t[0])}, {s(sT0)}, {v(vLi)}")
    A(f"v_lshlrev_b32 {v(t[0])}, 7, {v(t[0])}")
    A(f"v_bfe_u32 {v(t[1])}, {v(vLi)}, 1, 3")
    A(f"v_xor_b32 {v(t[1])}, {v(t[1])}, {v(vHb)}")
    for ks in range(4):
        A(f"v_xor_b32 {v(t[2])}, {2*ks}, {v(t[1])}")
        A(f"v_lshl_add_u32 {v(vXA+ks)}, {v(t[2])}, 4, {v(t[0])}")
        A(f"v_add_u32 {v(vXB+ks)}, 0x10000, {v(vXA+ks)}")
    A(f"v_bfe_u32 {v(t[0])}, {v(vLane)}, 2, 2")
    A(f"v_lshl_add_u32 {v(t[1])}, {v(vHb)}, 3, {v(t[0])}")
    A(f"v_lshlrev_b32 {v(t[1])}, 8, {v(t[1])}")
    A(f"v_xor_b32 {v(t[0])}, {s(sWC)}, {v(t[0])}")
    A(f"v_lshl_add_u32 {v(t[1])}, {v(t[0])}, 6, {v(t[1])}")
    A(f"v_bfe_u32 {v(t[0])}, {v(vLane)}, 4, 1")
    A(f"v_lshl_add_u32 {v(t[1])}, {v(t[0])}, 5, {v(t[1])}")
    A(f"v_and_b32 {v(t[0])}, 3, {v(vLane)}")
    A(f"v_lshl_add_u32 {v(t[1])}, {v(t[0])}, 3, {v(t[1])}")
    A(f"v_add_u32 {v(vWA)}, 16384, {v(t[1])}")
    A(f"v_add_u32 {v(vWB)}, 0x10000, {v(vWA)}")

    def reads(st, ks):
        slot = st % 4; b = ks % 2
        hiX = vXB if slot >= 2 else vXA; hiW = vWB if slot >= 2 else vWA
        off = (slot % 2) * 32768
        A(f"ds_read_b128 {v(Xf[b][0],4)}, {v(hiX+ks)} offset:{off}")
        A(f"ds_read_b128 {v(Xf[b][1],4)}, {v(hiX+ks)} offset:{off+4096}")
        A(f"ds_read_b64_tr_b16 {v(Wf[b],2)}, {v(hiW)} offset:{off+ks*4096}")
        A(f"ds_read_b64_tr_b16 {v(Wf[b]+2,2)}, {v(hiW)} offset:{off+ks*4096+1024}")

    assert DIST == 2
    def poll_issue():
        A(f"v_lshlrev_b32 {v(vFl)}, 2, {v(vLane)}")
        A(f"buffer_load_dword {v(vFl)}, {v(vFl)}, {s(sDB,4)}, 0 offen sc1")
    def poll_eval():
        A(f"v_and_b32 {v(vFl)}, {v(vFl)}, {v(vNeed)}")
        A(f"v_cmp_eq_u32 vcc, {v(vFl)}, {v(vNeed)}")
        A(f"s_cmp_eq_u64 vcc, -1")
        A(f"s_cselect_b32 {s(sOK)}, 1, 0")
    def stat_loads():
        A(f"s_lshl_b32 {s(sSb)}, {s(sRB)}, 10")
        A(f"s_add_u32 {s(sSb)}, {s(sSb)}, {WS_ST1:#x}")
        A(f"s_lshl_b32 {s(sCb)}, {s(sCG)}, 9")
        A(f"s_add_u32 {s(sCb)}, {s(sCb)}, {WS_CSP:#x}")
        A(f"s_cmp_eq_u32 {s(sOK)}, 1")
        A(f"s_cselect_b32 {s(sSb)}, {s(sSb)}, 0")
        A(f"s_cselect_b32 {s(sCb)}, {s(sCb)}, 0")
        A(f"v_and_b32 {v(t[6])}, 127, v0")
        A(f"v_lshlrev_b32 {v(t[7])}, 3, {v(t[6])}")
        A(f"buffer_load_dwordx2 {v(SL,2)}, {v(t[7])}, {s(sWS,4)}, {s(sSb)} offen sc1")
        A(f"v_lshrrev_b32 {v(t[7])}, 7, v0")
        A(f"v_mul_u32_u24 {v(t[7])}, {4*7680}, {v(t[7])}")
        A(f"v_lshl_add_u32 {v(t[7])}, {v(t[6])}, 2, {v(t[7])}")
        for i in range(4):
            A(f"buffer_load_dword {v(SL+2+i)}, {v(t[7])}, {s(sWS,4)}, {s(sCb)} offen sc1")
            if i < 3: A(f"s_add_u32 {s(sCb)}, {s(sCb)}, 7680")

    def mainloop(isV, tag):
        q0 = ["st0"]*4 + ["st1"]*4 + ["sa"]; qx = list(q0)
        def need(q, tags):
            last = max(i for i, x in enumerate(q) if x in tags)
            return len(q) - 1 - last
        def wait(tags):
            n0, nx = need(q0, tags), need(qx, tags)
            if n0 == nx:
                A(f"s_waitcnt vmcnt({n0})")
            else:
                L1 = A.newlabel(f"{name}_{tag}_wa"); L2 = A.newlabel(f"{name}_{tag}_wb")
                A(f"s_cmp_eq_u32 {s(sWV)}, 0")
                A(f"s_cbranch_scc1 {L1}")
                A(f"s_waitcnt vmcnt({nx})")
                A(f"s_branch {L2}")
                A.label(L1)
                A(f"s_waitcnt vmcnt({n0})")
                A.label(L2)
        PP = int(os.environ.get("PP", 5)); PE = int(os.environ.get("PE", 8))
        FL = int(os.environ.get("FL", 2))
        def sync(st):
            tags = [f"st{st}"]
            if st == FL: tags += ["sa", "cs"]
            if st == PE - 1: tags += ["poll"]
            wait(tags)
            if st == PE - 1:
                L = A.newlabel(f"{name}_{tag}_pe")
                A(f"s_cmp_eq_u32 {s(sWV)}, 0")
                A(f"s_cbranch_scc0 {L}")
                poll_eval()
                A(f"v_mov_b32 {v(t[6])}, {STX}")
                A(f"v_mov_b32 {v(t[7])}, {s(sOK)}")
                A(f"ds_write_b32 {v(t[6])}, {v(t[7])}")
                A("s_waitcnt lgkmcnt(0)")
                A.label(L)
            A("s_barrier")
            if st in (0, 5) or os.environ.get('P1_ALLST'): ST.stamp()
            if st == 0:
                L = A.newlabel(f"{name}_{tag}_cs")
                A(f"s_cmp_eq_u32 {s(sWV)}, 0")
                A(f"s_cbranch_scc0 {L}")
                A(f"v_lshlrev_b32 {v(t[6])}, 3, {v(vLane)}")
                A(f"v_add_u32 {v(t[7])}, {STX}, {v(t[6])}")
                P = Xf[0][0]
                for i in range(8): A(f"ds_read_b64 {v(P+2*i,2)}, {v(t[7])} offset:{i*512}")
                A("s_waitcnt lgkmcnt(0)")
                for i in range(1, 8):
                    A(f"v_add_f32 {v(P)}, {v(P)}, {v(P+2*i)}")
                    A(f"v_add_f32 {v(P+1)}, {v(P+1)}, {v(P+2*i+1)}")
                A(f"s_mul_i32 {s(sT0)}, {s(sRB)}, 7680")
                A(f"s_lshl_b32 {s(sT1)}, {s(sCG)}, 9")
                A(f"s_add_u32 {s(sT0)}, {s(sT0)}, {s(sT1)}")
                A(f"s_add_u32 {s(sT0)}, {s(sT0)}, {WS_CSP:#x}")
                A(f"buffer_store_dwordx2 {v(P,2)}, {v(t[6])}, {s(sWS,4)}, {s(sT0)} offen sc1")
                A("s_nop 1")
                A.label(L)
                q0.append("cs")
            if st + DIST <= 9 and not os.environ.get("NODMA"):
                dma(st + DIST); q0.extend([f"st{st+DIST}"]*4); qx.extend([f"st{st+DIST}"]*4)
            if st == PE - 1:
                A(f"v_mov_b32 {v(t[6])}, {STX}")
                A(f"ds_read_b32 {v(t[7])}, {v(t[6])}")
                A("s_waitcnt lgkmcnt(0)")
                A(f"v_readfirstlane_b32 {s(sOK)}, {v(t[7])}")
                stat_loads(); q0.extend(["sl"]*5); qx.extend(["sl"]*5)
            if st == PP or st == FL:
                L = A.newlabel(f"{name}_{tag}_fl")
                A(f"s_cmp_eq_u32 {s(sWV)}, 0")
                A(f"s_cbranch_scc0 {L}")
                if st == FL and not os.environ.get("NOFLAG"): write_flag(); q0.append("fl")
                if st == PP: poll_issue(); q0.append("poll")
                A.label(L)
        def step(st, ks):
            b = ks % 2
            for ti in range(2):
                c = "0" if (st == 0 and ks == 0) else v(acc[ti], 16)
                if isV: A(f"v_mfma_f32_32x32x16_bf16 {v(acc[ti],16)}, {v(Xf[b][ti],4)}, {v(Wf[b],4)}, {c}")
                else:   A(f"v_mfma_f32_32x32x16_bf16 {v(acc[ti],16)}, {v(Wf[b],4)}, {v(Xf[b][ti],4)}, {c}")
        sync(0)
        reads(0, 0)
        for st in range(10):
            for ks in range(4):
                if ks < 3:
                    reads(st, ks + 1)
                    A("s_waitcnt lgkmcnt(4)")
                    step(st, ks)
                elif st < 9:
                    A("s_waitcnt lgkmcnt(0)")
                    sync(st + 1)
                    reads(st + 1, 0)
                    step(st, ks)
                else:
                    A("s_waitcnt lgkmcnt(0)")
                    step(st, ks)

    def stats_exchange(tag):
        Lok = A.newlabel(f"{name}_{tag}_ok"); Lsp = A.newlabel(f"{name}_{tag}_spin"); Lgot = A.newlabel(f"{name}_{tag}_got")
        A("s_waitcnt vmcnt(0)")
        A(f"s_cmp_eq_u32 {s(sOK)}, 1")
        if os.environ.get("P1_FORCE_SLOW"): A(f"s_cmp_eq_u32 {s(sOK)}, 7")
        A(f"s_cbranch_scc1 {Lok}")
        A(f"s_mov_b32 s48, 0")
        A.label(Lsp)
        poll_issue()
        A("s_waitcnt vmcnt(0)")
        poll_eval()
        A(f"s_cmp_eq_u32 {s(sOK)}, 1")
        A(f"s_cbranch_scc1 {Lgot}")
        A("s_sleep 2")
        A(f"s_add_u32 s48, s48, 1")
        A(f"s_cmp_lt_u32 s48, 0x40000")
        A(f"s_cbranch_scc1 {Lsp}")
        A(f"s_mov_b32 {s(sOK)}, 1")
        A.label(Lgot)
        stat_loads()
        A("s_waitcnt vmcnt(0)")
        A.label(Lok)
        A(f"v_add_f32 {v(SL+2)}, {v(SL+2)}, {v(SL+3)}")
        A(f"v_add_f32 {v(SL+4)}, {v(SL+4)}, {v(SL+5)}")
        A(f"v_add_f32 {v(SL+2)}, {v(SL+2)}, {v(SL+4)}")
        A(f"v_lshlrev_b32 {v(t[0])}, 2, v0")
        A(f"ds_write_b32 {v(t[0])}, {v(SL+2)} offset:8192")
        Lc = A.newlabel(f"{name}_redc"); Ld = A.newlabel(f"{name}_redd")
        A(f"s_cmp_ge_u32 {s(sWV)}, 2")
        A(f"s_cbranch_scc1 {Lc}")
        A(f"v_lshlrev_b32 {v(t[0])}, 3, v0")
        A(f"ds_write_b64 {v(t[0])}, {v(SL,2)} offset:10240")
        A.label(Lc)
        A("s_waitcnt lgkmcnt(0)")
        A("s_barrier")
        A(f"s_cmp_ge_u32 {s(sWV)}, 2")
        A(f"s_cbranch_scc1 {Ld}")
        P = Xf[0][0]
        A(f"v_lshlrev_b32 {v(t[0])}, 2, v0")
        for i in range(4):
            A(f"ds_read_b32 {v(P+i)}, {v(t[0])} offset:{8192+i*512}")
        A("s_waitcnt lgkmcnt(0)")
        A(f"v_add_f32 {v(P)}, {v(P)}, {v(P+1)}")
        A(f"v_add_f32 {v(P+2)}, {v(P+2)}, {v(P+3)}")
        A(f"v_add_f32 {v(P)}, {v(P)}, {v(P+2)}")
        A(f"ds_write_b32 {v(t[0])}, {v(P)} offset:11264")
        A.label(Ld)
        A("s_waitcnt lgkmcnt(0)")
        A("s_barrier")

    LV = f"{name}_V"
    A(f"s_cmp_ge_u32 {s(sCG)}, 10")
    A(f"s_cbranch_scc1 {LV}")
    n0 = ST.n
    mainloop(False, "qk")
    ST.stamp()
    stats_exchange("qk")
    ST.stamp()
    P = Xf[0][0]
    M = Wf[0]
    A(f"s_lshl_b32 {s(sT0)}, {s(sWR)}, 6")
    A(f"v_add_u32 {v(t[0])}, {s(sT0)}, {v(vLi)}")
    A(f"v_lshlrev_b32 {v(t[0])}, 3, {v(t[0])}")
    A(f"ds_read_b64 {v(M,2)}, {v(t[0])} offset:10240")
    A(f"ds_read_b64 {v(M+2,2)}, {v(t[0])} offset:{10240+256}")
    A(f"s_lshl_b32 {s(sT0)}, {s(sWC)}, 7")
    A(f"v_lshl_add_u32 {v(t[1])}, {v(vHb)}, 4, {s(sT0)}")
    for g in range(4):
        A(f"ds_read_b128 {v(P+4*g,4)}, {v(t[1])} offset:{11264+32*g}")
    A(f"s_cmp_ge_u32 {s(sCG)}, 5")
    A(f"s_cselect_b32 {s(sT0)}, {WS_KM:#x}, {WS_QM:#x}")
    A(f"s_cselect_b32 {s(sT1)}, {WS_KR-WS_QR:#x}, 0")
    A(f"s_cselect_b32 {s(sT2)}, 1.0, {f32bits(QSCALE):#x}")
    A(f"s_cselect_b32 {s(sT3)}, 5, 0")
    A(f"s_sub_u32 {s(sT3)}, {s(sCG)}, {s(sT3)}")
    A(f"s_lshl_b32 {s(sT3)}, {s(sT3)}, 2")
    A(f"s_add_u32 {s(sT3)}, {s(sT3)}, {s(sWC)}")
    A(f"s_lshl_b32 {s(sT3)}, {s(sT3)}, 3")
    A(f"s_add_u32 {s(sT1)}, {s(sT1)}, {WS_QR:#x}")
    sTT = 36
    A(f"s_lshl_b32 {s(sTT)}, {s(sRB)}, 2")
    A(f"s_lshl_b32 {s(37)}, {s(sWR)}, 1")
    A(f"s_add_u32 {s(sTT)}, {s(sTT)}, {s(37)}")
    vMb, vRb, vC0 = t[2], t[3], t[4]
    A(f"s_lshl_b32 {s(37)}, {s(sTT)}, 10")
    A(f"s_add_u32 {s(37)}, {s(37)}, {s(sT0)}")
    A(f"v_lshl_add_u32 {v(vMb)}, {v(vLane)}, 4, {s(37)}")
    A(f"s_lshl_b32 {s(37)}, {s(sTT)}, 8")
    A(f"s_add_u32 {s(37)}, {s(37)}, {s(sT1)}")
    A(f"v_lshl_add_u32 {v(vRb)}, {v(vLi)}, 3, {s(37)}")
    A(f"v_add_u32 {v(vC0)}, {s(sT3)}, {v(vHb)}")
    A("s_waitcnt lgkmcnt(0)")
    A(f"v_mul_f32 {v(M+1)}, {s(sT2)}, {v(M+1)}")
    A(f"v_mul_f32 {v(M+3)}, {s(sT2)}, {v(M+3)}")
    vH, vE, vA0 = t[5], t[6], t[7]
    vA1 = t[0]; vPk = M+4
    for g in range(4):
        A(f"v_add_u32 {v(vE)}, {2*g}, {v(vC0)}")
        A(f"v_mul_u32_u24 {v(vH)}, 205, {v(vE)}")
        A(f"v_lshrrev_b32 {v(vH)}, 10, {v(vH)}")
        A(f"v_mul_u32_u24 {v(vA0)}, 5, {v(vH)}")
        A(f"v_sub_u32 {v(vE)}, {v(vE)}, {v(vA0)}")
        A(f"v_lshl_add_u32 {v(vA0)}, {v(vH)}, 16, {v(vMb)}")
        A(f"v_lshrrev_b32 {v(t[1])}, 1, {v(vE)}")
        A(f"v_lshl_add_u32 {v(vA0)}, {v(t[1])}, 3, {v(vA0)}")
        A(f"v_lshl_add_u32 {v(vH)}, {v(vH)}, 14, {v(vRb)}")
        A(f"v_cmp_eq_u32 vcc, 4, {v(vE)}")
        A(f"v_add_u32 {v(vA1)}, 1024, {v(vA0)}")
        A(f"v_add_u32 {v(t[1])}, 256, {v(vH)}")
        A(f"v_cndmask_b32 {v(vA0)}, {v(vA0)}, {v(vH)}, vcc")
        A(f"v_cndmask_b32 {v(vA1)}, {v(vA1)}, {v(t[1])}, vcc")
        for ti in range(2):
            for r in range(4):
                x = acc[ti] + 4*g + r
                A(f"v_fma_f32 {v(x)}, -{v(M+2*ti)}, {v(P+4*g+r)}, {v(x)}")
            for r in range(4):
                x = acc[ti] + 4*g + r
                A(f"v_mul_f32 {v(x)}, {v(M+2*ti+1)}, {v(x)}")
            x = acc[ti] + 4*g
            A(f"v_cvt_pk_bf16_f32 {v(x)}, {v(x)}, {v(x+1)}")
            A(f"v_cvt_pk_bf16_f32 {v(x+1)}, {v(x+2)}, {v(x+3)}")
            A(f"buffer_store_dwordx2 {v(x,2)}, {v(vA0 if ti == 0 else vA1)}, {s(sWS,4)}, 0 offen {os.environ.get('ST1','')}")
    ST.finish(sWV, t[0] + (t[0] % 2))
    A("s_endpgm")
    ST.n = n0
    A.label(LV)
    mainloop(True, "v")
    ST.stamp()
    stats_exchange("v")
    ST.stamp()
    A(f"s_lshl_b32 {s(sT0)}, {s(sWC)}, 5")
    A(f"v_add_u32 {v(t[0])}, {s(sT0)}, {v(vLi)}")
    A(f"v_lshlrev_b32 {v(t[1])}, 2, {v(t[0])}")
    A(f"ds_read_b32 {v(vCs)}, {v(t[1])} offset:11264")
    A(f"s_sub_u32 {s(sT1)}, {s(sCG)}, 10")
    A(f"s_lshl_b32 {s(sT1)}, {s(sT1)}, 7")
    A(f"v_add_u32 {v(t[0])}, {s(sT1)}, {v(t[0])}")
    A(f"v_mul_u32_u24 {v(t[2])}, 3277, {v(t[0])}")
    A(f"v_lshrrev_b32 {v(t[2])}, 16, {v(t[2])}")
    A(f"v_mul_u32_u24 {v(t[3])}, 20, {v(t[2])}")
    A(f"v_sub_u32 {v(t[0])}, {v(t[0])}, {v(t[3])}")
    A(f"v_mul_u32_u24 {v(t[2])}, {128*640}, {v(t[2])}")
    A(f"v_lshl_add_u32 {v(t[2])}, {v(t[0])}, 4, {v(t[2])}")
    A(f"v_mul_u32_u24 {v(t[3])}, 320, {v(vHb)}")
    A(f"v_add_u32 {v(t[2])}, {v(t[2])}, {v(t[3])}")
    A(f"s_lshl_b32 {s(sT0)}, {s(sRB)}, 2")
    A(f"s_lshl_b32 {s(sT1)}, {s(sWR)}, 1")
    A(f"s_add_u32 {s(sT0)}, {s(sT0)}, {s(sT1)}")
    A(f"s_mul_i32 {s(sT0)}, {s(sT0)}, 1280")
    A(f"s_add_u32 {s(sT0)}, {s(sT0)}, {WS_VT:#x}")
    A(f"v_add_u32 {v(t[2])}, {s(sT0)}, {v(t[2])}")
    A(f"s_lshl_b32 {s(sT0)}, {s(sWR)}, 9")
    A(f"v_lshl_add_u32 {v(t[4])}, {v(vHb)}, 5, {s(sT0)}")
    P = Xf[0][0]
    for ti in range(2):
        for gh in range(2):
            for gg in range(2):
                g = gh*2 + gg
                A(f"ds_read_b128 {v(P+8*gg,4)}, {v(t[4])} offset:{10240+ti*256+g*64}")
                A(f"ds_read_b128 {v(P+8*gg+4,4)}, {v(t[4])} offset:{10240+ti*256+g*64+16}")
            A("s_waitcnt lgkmcnt(0)")
            for gg in range(2):
                g = gh*2 + gg
                for r in range(4):
                    x = acc[ti] + 4*g + r
                    A(f"v_fma_f32 {v(x)}, -{v(P+8*gg+2*r)}, {v(vCs)}, {v(x)}")
                for r in range(4):
                    x = acc[ti] + 4*g + r
                    A(f"v_mul_f32 {v(x)}, {v(P+8*gg+2*r+1)}, {v(x)}")
            x = acc[ti] + 8*gh
            for i in range(4):
                A(f"v_cvt_pk_bf16_f32 {v(x+i)}, {v(x+2*i)}, {v(x+2*i+1)}")
            A(f"buffer_store_dwordx4 {v(x,4)}, {v(t[2])}, {s(sWS,4)}, 0 offen offset:{ti*1280+gh*640} {os.environ.get('ST1','')}")
    ST.finish(sWV, t[0] + (t[0] % 2))
    A.label(END)
    A("s_endpgm")
    A.label(LIDLE)
    A("s_waitcnt vmcnt(0)")
    token_stats()
    A("s_waitcnt vmcnt(0)")
    A("s_barrier")
    Lq = A.newlabel(f"{name}_idl")
    A(f"s_cmp_eq_u32 {s(sWV)}, 0")
    A(f"s_cbranch_scc0 {Lq}")
    write_flag()
    A.label(Lq)
    A("s_endpgm")
    return A.text(), kernel_desc(name, R.hi), (256, 512, 131072 + 4096)
```

```python
import sys, importlib
from common import *
import p1
HEADER = open("sequential_preLN__softmax_full_mha__glu_gated_swiglu__prompt.s.ref").read().split("; Override launch")[0]
def build(kernels, path):
    out = [HEADER.rstrip()]
    for (name, text, desc, (g, b, lds)) in kernels:
        out.append(f"; @launch kernel={name} grid=({g},1,1) block=({b},1,1) lds={lds}")
    out.append('.amdgcn_target "amdgcn-amd-amdhsa--gfx950"')
    out.append(".text")
    for (name, text, desc, cfg) in kernels:
        out.append(text)
        out.append(f"{name}_CODE_END:")
    out.append('.section .rodata,"a"')
    for (name, text, desc, cfg) in kernels:
        out.append(desc)
    open(path, "w").write("\n".join(out) + "\n")
if __name__ == "__main__":
    ks = []
    def add(name, fn):
        t, d, c = fn(name); ks.append((name, t, d, c))
    which = sys.argv[2].split(",") if len(sys.argv) > 2 else ["p1","p2","p3","p4","p5"]
    for p in which:
        m = importlib.import_module(p)
        add(m.NAME if hasattr(m,"NAME") else f"{p}_kernel", getattr(m, f"gen_{p}"))
    if MERGED:
        p1k = [k for k in ks if k[0] == "p1_kernel"]; rest = [k for k in ks if k[0] != "p1_kernel"]
        import re as _re
        vg = max(int(_re.search(r"next_free_vgpr (\d+)", k[2]).group(1)) for k in rest)
        lds = max(k[3][2] for k in rest)
        text = ""
        for k in rest: text += k[1] + f"\n{k[0]}_CODE_END:\n" if k is not rest[0] else k[1] + "\n"
        ks = p1k + [("p2_kernel", text, kernel_desc("p2_kernel", 256), (256, 512, lds))]
    build(ks, sys.argv[1])
```

```python
from asmlib import *
KA_X, KA_WQKV, KA_WO, KA_BX, KA_W1, KA_W3, KA_W2, KA_OUT, KA_DBG, KA_WS = [8*i for i in range(10)]
T = 2048; D = 640; H = 32; DH = 20; F = 1728
WS_QM = 0x000000
WS_QR = 0x200000
WS_KM = 0x280000
WS_KR = 0x480000
WS_VT = 0x500000
WS_OM = 0x780000
WS_OR = 0x980000
WS_H  = 0xA00000
WS_G  = 0xC80000
WS_A2 = 0x1340000
WS_W13F = 0x1400000
WS_W2F = 0x1840000
WS_WOF = 0x1A60000
WS_CS  = 0x1B30000
WS_ST2 = 0x1B40000
WS_ST1 = 0x1B80000
WS_CSP = 0x1B90000
WS_FLG2 = 0x1BC0000
WS_FLG3 = 0x1BC8000
WS_FLG4 = 0x1BD0000
WS_CNTRP = 0x1BD8000
WS_SIZE = 0x1C00000
SZ_X = T*D*2; SZ_WQKV = D*3*D*2; SZ_WO = D*D*2; SZ_W1 = D*F*2; SZ_W2 = F*D*2; SZ_OUT = T*D*2
QSCALE = (DH ** -0.5) * 1.4426950408889634
EPS = 1e-5

def srd(A, sreg, ptr_sreg, size):
    A(f"s_mov_b32 {s(sreg)}, {s(ptr_sreg)}")
    A(f"s_and_b32 {s(sreg+1)}, {s(ptr_sreg+1)}, 0xffff")
    A(f"s_mov_b32 {s(sreg+2)}, {size:#x}")
    A(f"s_mov_b32 {s(sreg+3)}, 0x20000")

import os
STAMP = os.environ.get("STAMP", "0") == "1"
WS_STAMP = 0x1F00000
class Stamper:
    def __init__(self, A, wsptr, base=60):
        self.A = A; self.n = 0; self.base = base; self.ws = wsptr
    names = []
    def stamp(self, tag=None):
        if not STAMP: return
        if os.environ.get("MERGED") == "1" and getattr(self, "mg", False):
            k = len(Stamper.names); Stamper.names.append(f"{self.mg}:{tag or self.n}"); self.n += 1
            if k == 0:
                self.A("s_memrealtime s[92:93]"); self.A("s_waitcnt lgkmcnt(0)"); self.A("v_writelane_b32 v255, s92, 62")
            self.A("s_memtime s[92:93]")
            self.A("s_waitcnt lgkmcnt(0)")
            self.A(f"v_writelane_b32 v255, s92, {k}")
            return
        if self.n == 0: self.A("s_memrealtime s[90:91]")
        self.A(f"s_memtime {s(self.base+2*self.n,2)}")
        self.A("s_waitcnt lgkmcnt(0)")
        self.n += 1
    def finish(self, sWV, vtmp, koff=0):
        if not STAMP: return
        A = self.A
        if os.environ.get("MERGED") == "1" and getattr(self, "mg", False):
            self.stamp("end")
            if self.mg == "p5":
                L = f"mstamp_skip"
                A("s_memrealtime s[92:93]"); A("s_waitcnt lgkmcnt(0) vmcnt(0)"); A("v_writelane_b32 v255, s92, 63")
                A(f"s_cmp_eq_u32 {s(sWV)}, 0")
                A(f"s_cbranch_scc0 {L}")
                A(f"s_lshl_b32 s58, s2, 8")
                A(f"s_add_u32 s58, s58, {WS_STAMP + 0x40000:#x}")
                A(f"s_add_u32 s58, {s(self.ws)}, s58")
                A(f"s_addc_u32 s59, {s(self.ws+1)}, 0")
                A(f"v_and_b32 {v(vtmp)}, 63, v0")
                A(f"v_lshlrev_b32 {v(vtmp)}, 2, {v(vtmp)}")
                A(f"global_store_dword {v(vtmp)}, v255, s[58:59]")
                A.label(L)
                open("mstamp_names.txt", "w").write("\n".join(Stamper.names))
            return
        self.stamp()
        A("s_memrealtime s[92:93]")
        Stamper.cnt = getattr(Stamper, "cnt", 0) + 1
        L = f"stamp_skip_k{koff}_{Stamper.cnt}"
        A("s_waitcnt lgkmcnt(0) vmcnt(0)")
        A(f"s_cmp_eq_u32 {s(sWV)}, 0")
        A(f"s_cbranch_scc0 {L}")
        A(f"s_lshl_b32 s58, s2, 6")
        A(f"s_add_u32 s58, s58, {WS_STAMP + koff*0x10000:#x}")
        A(f"s_add_u32 s58, {s(self.ws)}, s58")
        A(f"s_addc_u32 s59, {s(self.ws+1)}, 0")
        A(f"v_mov_b32 {v(vtmp+1)}, 0")
        for i in range(self.n):
            if i == 0:
                A(f"v_mov_b32 {v(vtmp)}, {s(self.base)}")
            else:
                A(f"s_sub_u32 {s(self.base+2*i)}, {s(self.base+2*i)}, {s(self.base)}")
                A(f"v_mov_b32 {v(vtmp)}, {s(self.base+2*i)}")
            A(f"global_store_dword {v(vtmp+1)}, {v(vtmp)}, s[58:59] offset:{4*i}")
            A("s_nop 1")
        A("s_sub_u32 s92, s92, s90")
        A(f"v_mov_b32 {v(vtmp)}, s92")
        A(f"global_store_dword {v(vtmp+1)}, {v(vtmp)}, s[58:59] offset:60")
        A(f"v_mov_b32 {v(vtmp)}, s90")
        A(f"global_store_dword {v(vtmp+1)}, {v(vtmp)}, s[58:59] offset:56")
        A.label(L)


def rot_init(A, sPh, sIdx, nst, t0, t1):
    A(f"s_lshr_b32 {s(t0)}, s2, 3")
    A(f"s_and_b32 {s(t1)}, {s(t0)}, 7")
    A(f"s_lshl_b32 {s(t1)}, {s(t1)}, 2")
    A(f"s_lshr_b32 {s(t0)}, {s(t0)}, 3")
    A(f"s_mul_i32 {s(t0)}, {s(t0)}, 9")
    A(f"s_add_u32 {s(t0)}, {s(t0)}, {s(t1)}")
    A(f"s_and_b32 {s(t0)}, {s(t0)}, 31")
    A(f"s_mul_i32 {s(t0)}, {s(t0)}, {nst}")
    A(f"s_lshr_b32 {s(sPh)}, {s(t0)}, 5")
def rot_next(A, sPh, nst):
    A(f"s_add_u32 {s(sPh)}, {s(sPh)}, 1")
    A(f"s_cmp_eq_u32 {s(sPh)}, {nst}")
    A(f"s_cselect_b32 {s(sPh)}, 0, {s(sPh)}")


def touch_loop(A, name, items, sWS, vdst, scnt, stmp, maxfly=2):
    for k, (creg, cval, vaddr, srdreg, soff, mask) in enumerate(items):
        L = A.newlabel(f"{name}_t")
        if creg is not None:
            A(f"s_cmp_eq_u32 {s(creg)}, {cval}")
            A(f"s_cbranch_scc0 {L}")
        A(f"s_waitcnt vmcnt({maxfly-1})")
        A(f"s_mov_b32 {s(stmp)}, {soff:#x}")
        if mask: A(f"s_mov_b64 exec, {mask}")
        A(f"buffer_load_dword {v(vdst)}, {v(vaddr)}, {s(srdreg,4)}, {s(stmp)} offen")
        if mask: A(f"s_mov_b64 exec, -1")
        A.label(L)


def sched_seq(N, S, Ld=1):
    G = N // S
    assert G * S == N
    mode = os.environ.get("SCHED", "0")
    if mode == "1":
        return [(i, None) for i in range(S)] + [(S*g, i) for g in range(1, G) for i in range(S)]
    if mode == "2":
        rest = [(S*g, i) for g in range(G) for i in range(S)]
        return [(i, None) for i in range(S)] + [(S*g, i) for g in range(1, G) for i in range(S)] if False else [(0, None)] + [(0, i) for i in range(1, S)] and _seq2(N, S)
    seq = [(S*g, 0) for g in range(min(Ld, G))]
    for g in range(G):
        if g + Ld < G: seq.append((S*(g+Ld), 0))
        for i in range(1, S): seq.append((S*g, i))
    assert len(seq) == N
    return seq
def _seq2(N, S):
    return [(i, None) for i in range(S)] + [(S*g, i) for g in range(1, N//S) for i in range(S)]
def sched_init(A, sU, S, t0, t1, local_mask=None):
    A(f"s_lshr_b32 {s(t0)}, s2, 3")
    if local_mask is not None:
        A(f"s_and_b32 {s(t0)}, {s(t0)}, {local_mask}")
    else:
        A(f"s_and_b32 {s(t1)}, {s(t0)}, 7")
        A(f"s_lshr_b32 {s(t0)}, {s(t0)}, 3")
        A(f"s_add_u32 {s(t0)}, {s(t0)}, {s(t1)}")
    if S & (S-1) == 0:
        A(f"s_and_b32 {s(sU)}, {s(t0)}, {S-1}")
    else:
        assert S == 3 or S == 5
        m = {3: 86, 5: 52}[S]
        A(f"s_mul_i32 {s(t1)}, {s(t0)}, {m}")
        A(f"s_lshr_b32 {s(t1)}, {s(t1)}, 8")
        A(f"s_mul_i32 {s(t1)}, {s(t1)}, {S}")
        A(f"s_sub_u32 {s(sU)}, {s(t0)}, {s(t1)}")
def sched_phys(A, sPh, sU, S, base, i):
    if i is None:
        A(f"s_mov_b32 {s(sPh)}, {base}")
    elif i == 0:
        A(f"s_add_u32 {s(sPh)}, {s(sU)}, {base}")
    else:
        A(f"s_add_u32 {s(sPh)}, {s(sU)}, {i}")
        A(f"s_cmp_ge_u32 {s(sPh)}, {S}")
        A(f"s_cselect_b32 s100, {S}, 0")
        A(f"s_sub_u32 {s(sPh)}, {s(sPh)}, s100")
        if base: A(f"s_add_u32 {s(sPh)}, {s(sPh)}, {base}")


def code_touch(A, name, targets, sWV, vLane, vtmp, spair, stmp):
    if os.environ.get("NO_CTOUCH") or os.environ.get("ONLY12") and name.startswith("p2"): return
    L = A.newlabel(f"{name}_ct"); P = A.newlabel(f"{name}_pc")
    A(f"s_cmp_eq_u32 {s(sWV)}, 7")
    A(f"s_cbranch_scc0 {L}")
    first, last = targets
    A(f"s_getpc_b64 {s(spair,2)}")
    A.label(P)
    A(f"s_add_u32 {s(spair)}, {s(spair)}, {first}-{P}")
    A(f"s_addc_u32 {s(spair+1)}, {s(spair+1)}, 0")
    A(f"s_lshr_b32 {s(stmp)}, s2, 3")
    A(f"s_lshl_b32 {s(stmp)}, {s(stmp)}, 13")
    A(f"s_cmp_ge_u32 {s(stmp)}, {last}-{first}")
    A(f"s_cbranch_scc1 {L}")
    A(f"v_lshl_add_u32 {v(vtmp)}, {v(vLane)}, 7, {s(stmp)}")
    A(f"v_min_u32 {v(vtmp)}, {last}-{first}-4, {v(vtmp)}")
    A(f"global_load_dword {v(vtmp)}, {v(vtmp)}, {s(spair,2)}")
    A.label(L)


MERGED = os.environ.get("MERGED", "0") == "1"
SC = " sc1" if MERGED else ""
LOCAL = MERGED and os.environ.get("LOCAL", "0") == "1"
SCS = "" if LOCAL else SC
EARLY = MERGED and os.environ.get("EARLY", "0") == "1"

def mg_publish(A, name, sWS, sWV, sId, base, vt0, vt1, stmp, ST=None):
    L = A.newlabel(f"{name}_pub")
    if ST and os.environ.get("MG_DIAG"): ST.stamp()
    A("s_waitcnt vmcnt(0)")
    if ST and os.environ.get("MG_DIAG"): ST.stamp()
    A("s_barrier")
    A(f"s_cmp_eq_u32 {s(sWV)}, 0")
    A(f"s_cbranch_scc0 {L}")
    A(f"s_lshl_b32 {s(stmp)}, {s(sId)}, 7")
    A(f"s_add_u32 {s(stmp)}, {s(stmp)}, {base:#x}")
    A(f"v_mov_b32 {v(vt0)}, 0")
    A(f"v_mov_b32 {v(vt1)}, 1")
    A(f"s_mov_b64 exec, 1")
    A(f"buffer_store_dword {v(vt1)}, {v(vt0)}, {s(sWS,4)}, {s(stmp)} offen sc1")
    A(f"s_mov_b64 exec, -1")
    A.label(L)

def mg_wait(A, name, sWS, sWV, vAddr, vExp, vVal, mask, scnt, ST=None):
    L = A.newlabel(f"{name}_wd"); Lp = A.newlabel(f"{name}_wp")
    if ST and os.environ.get("MG_DIAG"): ST.stamp()
    A(f"s_cmp_eq_u32 {s(sWV)}, 0")
    A(f"s_cbranch_scc0 {L}")
    A(f"s_mov_b32 {s(scnt)}, 0")
    A(f"s_mov_b32 exec_lo, {mask}")
    A(f"s_mov_b32 exec_hi, 0")
    A.label(Lp)
    A(f"buffer_load_dword {v(vVal)}, {v(vAddr)}, {s(sWS,4)}, 0 offen sc1")
    A("s_waitcnt vmcnt(0)")
    A(f"v_cmp_eq_u32 vcc, {v(vVal)}, {v(vExp)}")
    A(f"s_cmp_eq_u64 vcc, exec")
    A(f"s_cbranch_scc1 {L}_ok")
    A("s_sleep 1")
    A(f"s_add_u32 {s(scnt)}, {s(scnt)}, 1")
    A(f"s_cmp_lt_u32 {s(scnt)}, 0x100000")
    A(f"s_cbranch_scc1 {Lp}")
    A.label(f"{L}_ok")
    A(f"s_mov_b64 exec, -1")
    A.label(L)
    if ST and os.environ.get("MG_DIAG"): ST.stamp()
    A("s_barrier")


S_PID, S_PVAL = 94, 95
def mg_set_pending(A, sId):
    A(f"s_mov_b32 {s(S_PID)}, {s(sId)}")
    A(f"s_mov_b32 {s(S_PVAL)}, 1")
def mg_publish_pending(A, name, sWS, sWV, base, nafter, vt0, vt1, stmp, ST=None):
    L = A.newlabel(f"{name}_pub")
    if ST and os.environ.get("MG_DIAG"): ST.stamp("pre-drain")
    A(f"s_waitcnt vmcnt({nafter})")
    if ST and os.environ.get("MG_DIAG"): ST.stamp("drained")
    A("s_barrier")
    A(f"s_cmp_eq_u32 {s(sWV)}, 0")
    A(f"s_cbranch_scc0 {L}")
    A(f"s_cmp_eq_u32 {s(S_PVAL)}, 1")
    A(f"s_cbranch_scc0 {L}")
    A(f"s_lshl_b32 {s(stmp)}, {s(S_PID)}, 7")
    A(f"s_add_u32 {s(stmp)}, {s(stmp)}, {base:#x}")
    A(f"v_mov_b32 {v(vt0)}, 0")
    A(f"v_mov_b32 {v(vt1)}, 1")
    A(f"s_mov_b64 exec, 1")
    A(f"buffer_store_dword {v(vt1)}, {v(vt0)}, {s(sWS,4)}, {s(stmp)} offen{SCS}")
    A(f"s_mov_b64 exec, -1")
    A.label(L)
    A(f"s_mov_b32 {s(S_PVAL)}, 0")

class VQ:
    def __init__(self): self.q = []
    def add(self, tag, n=1): self.q += [tag] * n
    def after(self, *tags):
        last = max(i for i, x in enumerate(self.q) if x in tags)
        return len(self.q) - 1 - last


def early_w35(which, sWS, sWV):
    NS = 10 if which == 3 else 27
    n = 13 if which == 3 else 15
    base = WS_WOF if which == 3 else WS_W2F
    ngc = ["s_lshr_b32 s96, s2, 5"] if LOCAL else ["s_and_b32 s96, s2, 1", "s_lshl_b32 s96, s96, 2", "s_lshr_b32 s97, s2, 6", "s_add_u32 s96, s96, s97"]
    setup = ngc + [
             f"s_mul_i32 s96, s96, {NS*10240}", f"s_lshl_b32 s97, {s(sWV)}, 10", "s_add_u32 s96, s96, s97",
             f"s_add_u32 s96, s96, {base:#x}", "v_and_b32 v253, 63, v0", "v_lshlrev_b32 v253, 4, v253"]
    loads = [[f"s_add_u32 m0, s97, {i*8192}", f"s_add_u32 s98, s96, {i*8192}",
              f"buffer_load_dwordx4 v253, {s(sWS,4)}, s98 offen sc1 lds"] for i in range(n)]
    return setup, loads

def early_w4(sWS, sWV, nst, SLOT):
    if LOCAL:
        cgc = ["s_lshr_b32 s96, s2, 4", "s_cmp_ge_u32 s96, 14", "s_cselect_b32 s99, 1, 0"]
    else:
        cgc = ["s_and_b32 s96, s2, 3", "s_lshr_b32 s97, s2, 6",
             "s_cmp_lt_u32 s96, 2", "s_cselect_b32 s98, 4, 3",
             "s_cmp_ge_u32 s97, s98", "s_cselect_b32 s99, 1, 0",
             "s_lshl_b32 s98, s96, 2", "s_cmp_eq_u32 s96, 3", "s_cselect_b32 s98, 11, s98",
             "s_add_u32 s96, s98, s97"]
    setup = cgc + [
             "s_lshl_b32 s96, s96, 2", f"s_lshr_b32 s97, {s(sWV)}, 1", "s_add_u32 s96, s96, s97", "s_mul_i32 s96, s96, 40",
             f"s_and_b32 s97, {s(sWV)}, 1", "s_add_u32 s96, s96, s97", "s_lshl_b32 s96, s96, 11", f"s_add_u32 s96, s96, {WS_W13F:#x}",
             "s_cmp_eq_u32 s99, 1", "s_cselect_b32 s96, 0x7ff00000, s96",
             f"s_lshl_b32 s97, {s(sWV)}, 11", "v_and_b32 v253, 63, v0", "v_lshlrev_b32 v253, 4, v253"]
    loads = [[f"s_add_u32 m0, s97, {st*SLOT + 8192 + m_*1024}", f"s_add_u32 s98, s96, {st*4096 + m_*1024}",
              f"buffer_load_dwordx4 v253, {s(sWS,4)}, s98 offen sc1 lds"] for st in range(nst) for m_ in range(2)]
    return setup, loads

def capture(A, fn, *args):
    n0 = len(A.lines); fn(*args); out = [x.strip() for x in A.lines[n0:]]; del A.lines[n0:]; return out
def weave_groups(A, body, groups):
    n = len(groups)
    if n == 0:
        for x in body: A(x)
        return
    step = max(1, len(body) // (n + 1))
    k = 0
    for i, x in enumerate(body):
        A(x)
        if k < n and (i + 1) % step == 0:
            for y in groups[k]: A(y)
            k += 1
    for g in groups[k:]:
        for y in g: A(y)
```

```python
from common import *
import os

def gen_p1(name="p1_qkv_kernel"):
    A = Asm()
    A.raw(kernel_header(name))
    END = f"{name}_END"
    sX, sW, sWS = 8, 12, 16
    sRB, sCG, sWV, sWR, sWC, sM, sXo, sWo = 20, 21, 22, 23, 28, 29, 30, 31
    sT0, sT1, sT2, sT3 = 32, 33, 34, 35
    sPh = 38
    ST = Stamper(A, 24)
    ST.stamp()
    A(f"s_cmp_ge_u32 s2, 256")
    A(f"s_cbranch_scc1 {END}")
    A(f"s_load_dwordx4 s[4:7], s[0:1], {KA_X}")
    A(f"s_load_dwordx2 s[24:25], s[0:1], {KA_WS}")
    A(f"s_and_b32 {s(sT0)}, s2, 7")
    A(f"s_lshr_b32 {s(sT1)}, s2, 3")
    A(f"s_lshr_b32 {s(sT2)}, {s(sT0)}, 2")
    A(f"s_lshl_b32 {s(sT2)}, {s(sT2)}, 3")
    A(f"s_and_b32 {s(sT3)}, {s(sT1)}, 7")
    A(f"s_add_u32 {s(sRB)}, {s(sT2)}, {s(sT3)}")
    A(f"s_and_b32 {s(sT2)}, {s(sT0)}, 3")
    A(f"s_lshl_b32 {s(sT2)}, {s(sT2)}, 2")
    A(f"s_lshr_b32 {s(sT3)}, {s(sT1)}, 3")
    A(f"s_add_u32 {s(sCG)}, {s(sT2)}, {s(sT3)}")
    A(f"s_load_dwordx2 s[26:27], s[0:1], {KA_DBG}")
    R = Regs(1, 256)
    vLane = R.alloc(); vLi = R.alloc(); vHb = R.alloc()
    vX0 = R.alloc(); vX1 = R.alloc(); vW0 = R.alloc(); vW1 = R.alloc()
    vXA = R.alloc(4, 1); vXB = R.alloc(4, 1); vWA = R.alloc(); vWB = R.alloc()
    vOne = R.alloc()
    vSt = R.alloc(4, 2)
    vCs = R.alloc()
    accC = R.alloc(16, 4); ONE4 = R.alloc(4, 4)
    LA = R.alloc(80, 4)
    vFl = R.alloc(); vNeed = R.alloc(); SL = R.alloc(6, 2)
    sDB = 40; sOK = 44; sSb = 45; sCb = 46
    STX = 131072
    t = [R.alloc() for _ in range(8)]
    acc = [R.alloc(16, 4), R.alloc(16, 4)]
    Xf = [[R.alloc(4, 4), R.alloc(4, 4)] for _ in range(2)]
    Wf = [R.alloc(4, 4) for _ in range(2)]
    A(f"v_lshrrev_b32 {v(t[0])}, 6, v0")
    A(f"v_and_b32 {v(vLane)}, 63, v0")
    A(f"v_readfirstlane_b32 {s(sWV)}, {v(t[0])}")
    A(f"v_and_b32 {v(vLi)}, 31, {v(vLane)}")
    A(f"v_lshrrev_b32 {v(vHb)}, 5, {v(vLane)}")
    A(f"s_lshr_b32 {s(sWR)}, {s(sWV)}, 2")
    A(f"s_and_b32 {s(sWC)}, {s(sWV)}, 3")
    A(f"s_lshl_b32 {s(sM)}, {s(sWV)}, 11")
    code_touch(A, name, ("p2_kernel", "p2_kernel_CODE_END"), sWV, vLane, R.alloc(), 50, 52)
    A(f"s_lshl_b32 {s(sT0)}, {s(sRB)}, 7")
    A(f"s_lshl_b32 {s(sT1)}, {s(sWV)}, 4")
    A(f"s_add_u32 {s(sT0)}, {s(sT0)}, {s(sT1)}")
    A(f"v_lshrrev_b32 {v(t[0])}, 3, {v(vLane)}")
    A(f"v_add_u32 {v(t[0])}, {s(sT0)}, {v(t[0])}")
    A(f"v_mul_u32_u24 {v(t[0])}, 1280, {v(t[0])}")
    A(f"v_and_b32 {v(t[1])}, 7, {v(vLane)}")
    A(f"v_lshrrev_b32 {v(t[2])}, 4, {v(vLane)}")
    A(f"v_xor_b32 {v(t[1])}, {v(t[1])}, {v(t[2])}")
    A(f"v_lshl_add_u32 {v(vX0)}, {v(t[1])}, 4, {v(t[0])}")
    A(f"v_xor_b32 {v(t[1])}, 4, {v(t[1])}")
    A(f"v_lshl_add_u32 {v(vX1)}, {v(t[1])}, 4, {v(t[0])}")
    A(f"v_add_u32 {v(vX1)}, 10240, {v(vX1)}")
    A(f"s_lshl_b32 {s(sT1)}, {s(sWV)}, 3")
    A(f"v_add_u32 {v(t[0])}, {s(sT1)}, {v(t[2])}")
    A(f"v_mul_u32_u24 {v(t[0])}, 3840, {v(t[0])}")
    A(f"s_lshl_b32 {s(sT2)}, {s(sCG)}, 8")
    A(f"v_add_u32 {v(t[0])}, {s(sT2)}, {v(t[0])}")
    A(f"v_bfe_u32 {v(t[1])}, {v(vLane)}, 2, 2")
    A(f"v_xor_b32 {v(t[1])}, {v(t[1])}, {v(t[2])}")
    A(f"v_lshl_add_u32 {v(t[0])}, {v(t[1])}, 6, {v(t[0])}")
    A(f"v_and_b32 {v(t[1])}, 3, {v(vLane)}")
    A(f"v_lshl_add_u32 {v(vW0)}, {v(t[1])}, 4, {v(t[0])}")
    A(f"v_add_u32 {v(vW1)}, 15360, {v(vW0)}")
    A("s_waitcnt lgkmcnt(0)")
    srd(A, sX, 4, SZ_X); srd(A, sW, 6, SZ_WQKV); srd(A, sWS, 24, WS_SIZE); srd(A, sDB, 26, 256)
    if MERGED:
        Lz = A.newlabel(f"{name}_zf")
        A(f"s_cmp_eq_u32 {s(sWV)}, 1")
        A(f"s_cbranch_scc0 {Lz}")
        A(f"v_lshlrev_b32 {v(t[0])}, 15, {v(vLane)}")
        A(f"s_lshl_b32 {s(sT0)}, s2, 7")
        A(f"s_add_u32 {s(sT0)}, {s(sT0)}, {WS_FLG2:#x}")
        A(f"v_mov_b32 {v(t[1])}, 0")
        A(f"s_mov_b64 exec, 0xf")
        A(f"buffer_store_dword {v(t[1])}, {v(t[0])}, {s(sWS,4)}, {s(sT0)} offen")
        A(f"s_mov_b64 exec, -1")
        A.label(Lz)
    LIDLE = f"{name}_idle"
    A(f"s_cmp_ge_u32 {s(sCG)}, 15")
    A(f"s_cbranch_scc1 {LIDLE}")
    def write_flag():
        A(f"v_mov_b32 {v(t[6])}, 0")
        A(f"v_mov_b32 {v(t[7])}, 1")
        A(f"s_mov_b64 exec, 1")
        A(f"buffer_store_byte {v(t[7])}, {v(t[6])}, {s(sDB,4)}, {s(sRB)} offen sc1")
        A(f"s_mov_b64 exec, -1")
    SS = int(os.environ.get("S1", 5))
    seq = sched_seq(10, SS, int(os.environ.get("LD", 1)))
    sU = 39
    sched_init(A, sU, SS, sT0, sT1)
    def dma(st):
        base = (st % 4) * 32768
        sched_phys(A, sPh, sU, SS, *seq[st])
        A(f"s_lshl_b32 {s(sXo)}, {s(sPh)}, 7")
        A(f"s_add_u32 m0, {s(sM)}, {base}")
        A(f"s_mul_i32 {s(sWo)}, {s(sPh)}, {64*3840}")
        A(f"buffer_load_dwordx4 {v(vX0)}, {s(sX,4)}, {s(sXo)} offen lds")
        A(f"s_add_u32 m0, {s(sM)}, {base+1024}")
        A("s_nop 0")
        A(f"buffer_load_dwordx4 {v(vX1)}, {s(sX,4)}, {s(sXo)} offen lds")
        A(f"s_add_u32 m0, {s(sM)}, {base+16384}")
        A("s_nop 0")
        A(f"buffer_load_dwordx4 {v(vW0)}, {s(sW,4)}, {s(sWo)} offen lds")
        A(f"s_add_u32 m0, {s(sM)}, {base+16384+1024}")
        A("s_nop 0")
        A(f"buffer_load_dwordx4 {v(vW1)}, {s(sW,4)}, {s(sWo)} offen lds")
    ST.stamp()
    DIST = int(os.environ.get('P1_DIST', 2))
    for st in range(DIST): dma(st)
    for i in range(4): A(f"v_mov_b32 {v(ONE4+i)}, 0x3f803f80")
    A(f"s_lshl_b32 {s(sT0)}, {s(sWR)}, 6")
    A(f"v_add_u32 {v(t[0])}, {s(sT0)}, {v(vLi)}")
    A(f"v_lshlrev_b32 {v(t[0])}, 7, {v(t[0])}")
    A(f"v_bfe_u32 {v(t[1])}, {v(vLi)}, 1, 3")
    A(f"v_xor_b32 {v(t[1])}, {v(t[1])}, {v(vHb)}")
    for ks in range(4):
        A(f"v_xor_b32 {v(t[2])}, {2*ks}, {v(t[1])}")
        A(f"v_lshl_add_u32 {v(vXA+ks)}, {v(t[2])}, 4, {v(t[0])}")
        A(f"v_add_u32 {v(vXB+ks)}, 0x10000, {v(vXA+ks)}")
    A(f"v_bfe_u32 {v(t[0])}, {v(vLane)}, 2, 2")
    A(f"v_lshl_add_u32 {v(t[1])}, {v(vHb)}, 3, {v(t[0])}")
    A(f"v_lshlrev_b32 {v(t[1])}, 8, {v(t[1])}")
    A(f"v_xor_b32 {v(t[0])}, {s(sWC)}, {v(t[0])}")
    A(f"v_lshl_add_u32 {v(t[1])}, {v(t[0])}, 6, {v(t[1])}")
    A(f"v_bfe_u32 {v(t[0])}, {v(vLane)}, 4, 1")
    A(f"v_lshl_add_u32 {v(t[1])}, {v(t[0])}, 5, {v(t[1])}")
    A(f"v_and_b32 {v(t[0])}, 3, {v(vLane)}")
    A(f"v_lshl_add_u32 {v(t[1])}, {v(t[0])}, 3, {v(t[1])}")
    A(f"v_add_u32 {v(vWA)}, 16384, {v(t[1])}")
    A(f"v_add_u32 {v(vWB)}, 0x10000, {v(vWA)}")

    def reads(st, ks):
        slot = st % 4; b = ks % 2
        hiX = vXB if slot >= 2 else vXA; hiW = vWB if slot >= 2 else vWA
        off = (slot % 2) * 32768
        A(f"ds_read_b128 {v(Xf[b][0],4)}, {v(hiX+ks)} offset:{off}")
        A(f"ds_read_b128 {v(Xf[b][1],4)}, {v(hiX+ks)} offset:{off+4096}")
        A(f"ds_read_b64_tr_b16 {v(Wf[b],2)}, {v(hiW)} offset:{off+ks*4096}")
        A(f"ds_read_b64_tr_b16 {v(Wf[b]+2,2)}, {v(hiW)} offset:{off+ks*4096+1024}")

    assert DIST == 2
    def poll_issue():
        A(f"s_and_b32 {s(sT0)}, {s(sRB)}, 12")
        A(f"v_mov_b32 {v(vFl)}, {s(sT0)}")
        A(f"buffer_load_dword {v(vFl)}, {v(vFl)}, {s(sDB,4)}, 0 offen sc1")
    def poll_eval():
        A(f"v_readfirstlane_b32 {s(sT0)}, {v(vFl)}")
        A(f"s_and_b32 {s(sT1)}, {s(sRB)}, 3")
        A(f"s_lshl_b32 {s(sT1)}, {s(sT1)}, 3")
        A(f"s_lshr_b32 {s(sT0)}, {s(sT0)}, {s(sT1)}")
        A(f"s_and_b32 {s(sOK)}, {s(sT0)}, 1")
    def stat_loads():
        A(f"s_lshl_b32 {s(sSb)}, {s(sRB)}, 10")
        A(f"s_add_u32 {s(sSb)}, {s(sSb)}, {WS_ST1:#x}")
        A(f"s_cmp_eq_u32 {s(sOK)}, 1")
        A(f"s_cselect_b32 {s(sSb)}, {s(sSb)}, 0")
        A(f"v_and_b32 {v(t[6])}, 127, v0")
        A(f"v_lshlrev_b32 {v(t[7])}, 3, {v(t[6])}")
        A(f"buffer_load_dwordx2 {v(SL,2)}, {v(t[7])}, {s(sWS,4)}, {s(sSb)} offen sc1")

    def mainloop(isV, tag):
        q0 = ["st0"]*4 + ["st1"]*4; qx = list(q0)
        def need(q, tags):
            last = max(i for i, x in enumerate(q) if x in tags)
            return len(q) - 1 - last
        def wait(tags):
            n0, nx = need(q0, tags), need(qx, tags)
            if n0 == nx:
                A(f"s_waitcnt vmcnt({n0})")
            else:
                L1 = A.newlabel(f"{name}_{tag}_wa"); L2 = A.newlabel(f"{name}_{tag}_wb")
                A(f"s_cmp_eq_u32 {s(sWV)}, 0")
                A(f"s_cbranch_scc1 {L1}")
                A(f"s_waitcnt vmcnt({nx})")
                A(f"s_branch {L2}")
                A.label(L1)
                A(f"s_waitcnt vmcnt({n0})")
                A.label(L2)
        PP = int(os.environ.get("PP", 5)); PE = int(os.environ.get("PE", 9))
        def sync(st):
            tags = [f"st{st}"]
            if st == PE - 1: tags += ["poll"]
            wait(tags)
            if st == PE - 1:
                L = A.newlabel(f"{name}_{tag}_pe")
                A(f"s_cmp_eq_u32 {s(sWV)}, 0")
                A(f"s_cbranch_scc0 {L}")
                poll_eval()
                A(f"v_mov_b32 {v(t[6])}, {STX}")
                A(f"v_mov_b32 {v(t[7])}, {s(sOK)}")
                A(f"ds_write_b32 {v(t[6])}, {v(t[7])}")
                A("s_waitcnt lgkmcnt(0)")
                A.label(L)
            A("s_barrier")
            if st in (0, 5) or os.environ.get('P1_ALLST'): ST.stamp()
            dl = []
            if st + DIST <= 9 and not os.environ.get("NODMA"):
                dl = capture(A, dma, st + DIST); q0.extend([f"st{st+DIST}"]*4); qx.extend([f"st{st+DIST}"]*4)
            if st == PE - 1 or st == PP or st == 0:
                for y in dl: A(y)
                dl = []
            if st == PE - 1:
                A(f"v_mov_b32 {v(t[6])}, {STX}")
                A(f"ds_read_b32 {v(t[7])}, {v(t[6])}")
                A("s_waitcnt lgkmcnt(0)")
                A(f"v_readfirstlane_b32 {s(sOK)}, {v(t[7])}")
                stat_loads(); q0.extend(["sl"]); qx.extend(["sl"])
            if st == PP:
                L = A.newlabel(f"{name}_{tag}_fl")
                A(f"s_cmp_eq_u32 {s(sWV)}, 0")
                A(f"s_cbranch_scc0 {L}")
                poll_issue(); q0.append("poll")
                A.label(L)
            return dl
        def mfl(st, ks):
            b = ks % 2; out = []
            for ti in range(2):
                c = "0" if (st == 0 and ks == 0) else v(acc[ti], 16)
                if isV: out.append(f"v_mfma_f32_32x32x16_bf16 {v(acc[ti],16)}, {v(Xf[b][ti],4)}, {v(Wf[b],4)}, {c}")
                else:   out.append(f"v_mfma_f32_32x32x16_bf16 {v(acc[ti],16)}, {v(Wf[b],4)}, {v(Xf[b][ti],4)}, {c}")
            return out
        def csm(st, ks):
            b = ks % 2
            L = A.newlabel(f"{name}_{tag}_cm")
            A(f"s_cbranch_vccnz {L}")
            c = "0" if (st == 0 and ks == 0) else v(accC, 16)
            if isV: A(f"v_mfma_f32_32x32x16_bf16 {v(accC,16)}, {v(ONE4,4)}, {v(Wf[b],4)}, {c}")
            else:   A(f"v_mfma_f32_32x32x16_bf16 {v(accC,16)}, {v(Wf[b],4)}, {v(ONE4,4)}, {c}")
            A.label(L)
        def step(st, ks, fill):
            m = mfl(st, ks)
            h = (len(fill) + 1) // 2
            A(m[0])
            for y in fill[:h]: A(y)
            A(m[1])
            for y in fill[h:]: A(y)
            csm(st, ks)
        A(f"s_cmp_eq_u32 {s(sWR)}, 1")
        A(f"s_cselect_b64 vcc, -1, 0")
        sync(0)
        reads(0, 0)
        pend = []
        for st in range(10):
            for ks in range(4):
                A("s_waitcnt lgkmcnt(0)")
                if ks < 3:
                    fill = capture(A, reads, st, ks + 1)
                elif st < 9:
                    pend = sync(st + 1)
                    fill = capture(A, reads, st + 1, 0)
                else:
                    fill = []
                take = pend[:(len(pend) + 2) // 3] if ks != 3 else pend[:len(pend) // 4]
                while take and take[-1].startswith("s_cmp"): take = pend[:len(take) + 1]
                pend = pend[len(take):]
                if ks == 2: take += pend; pend = []
                fill = fill + take
                step(st, ks, fill)

    def stats_exchange(tag):
        Lok = A.newlabel(f"{name}_{tag}_ok"); Lsp = A.newlabel(f"{name}_{tag}_spin"); Lgot = A.newlabel(f"{name}_{tag}_got")
        A("s_waitcnt vmcnt(0)")
        A(f"s_cmp_eq_u32 {s(sOK)}, 1")
        if os.environ.get("P1_FORCE_SLOW"): A(f"s_cmp_eq_u32 {s(sOK)}, 7")
        A(f"s_cbranch_scc1 {Lok}")
        A(f"s_mov_b32 s48, 0")
        A.label(Lsp)
        poll_issue()
        A("s_waitcnt vmcnt(0)")
        poll_eval()
        A(f"s_cmp_eq_u32 {s(sOK)}, 1")
        A(f"s_cbranch_scc1 {Lgot}")
        A("s_sleep 2")
        A(f"s_add_u32 s48, s48, 1")
        A(f"s_cmp_lt_u32 s48, 0x40000")
        A(f"s_cbranch_scc1 {Lsp}")
        A(f"s_mov_b32 {s(sOK)}, 1")
        A.label(Lgot)
        stat_loads()
        A("s_waitcnt vmcnt(0)")
        A.label(Lok)
        Lw = A.newlabel(f"{name}_csw")
        A(f"s_lshl_b32 {s(sT0)}, {s(sWC)}, 12")
        A(f"v_lshl_add_u32 {v(t[1])}, {v(vLane)}, 4, {s(sT0)}")
        A(f"s_cmp_eq_u32 {s(sWR)}, 0")
        A(f"s_cbranch_scc0 {Lw}")
        for i in range(4): A(f"ds_write_b128 {v(t[1])}, {v(accC+4*i,4)} offset:{16384+i*1024}")
        A.label(Lw)
        Lc = A.newlabel(f"{name}_redc")
        A(f"s_cmp_ge_u32 {s(sWV)}, 2")
        A(f"s_cbranch_scc1 {Lc}")
        A(f"v_lshlrev_b32 {v(t[0])}, 3, v0")
        A(f"ds_write_b64 {v(t[0])}, {v(SL,2)} offset:10240")
        A.label(Lc)
        A("s_waitcnt lgkmcnt(0)")
        A("s_barrier")
        Lr = A.newlabel(f"{name}_csr")
        A(f"s_cmp_eq_u32 {s(sWR)}, 1")
        A(f"s_cbranch_scc0 {Lr}")
        for i in range(4): A(f"ds_read_b128 {v(accC+4*i,4)}, {v(t[1])} offset:{16384+i*1024}")
        A("s_waitcnt lgkmcnt(0)")
        A.label(Lr)

    LV = f"{name}_V"
    A(f"s_cmp_ge_u32 {s(sCG)}, 10")
    A(f"s_cbranch_scc1 {LV}")
    n0 = ST.n
    mainloop(False, "qk")
    ST.stamp()
    stats_exchange("qk")
    ST.stamp()
    P = accC
    M = Wf[0]
    A(f"s_lshl_b32 {s(sT0)}, {s(sWR)}, 6")
    A(f"v_add_u32 {v(t[0])}, {s(sT0)}, {v(vLi)}")
    A(f"v_lshlrev_b32 {v(t[0])}, 3, {v(t[0])}")
    A(f"ds_read_b64 {v(M,2)}, {v(t[0])} offset:10240")
    A(f"ds_read_b64 {v(M+2,2)}, {v(t[0])} offset:{10240+256}")
    A(f"s_cmp_ge_u32 {s(sCG)}, 5")
    A(f"s_cselect_b32 {s(sT0)}, {WS_KM:#x}, {WS_QM:#x}")
    A(f"s_cselect_b32 {s(sT1)}, {WS_KR-WS_QR:#x}, 0")
    A(f"s_cselect_b32 {s(sT2)}, 1.0, {f32bits(QSCALE):#x}")
    A(f"s_cselect_b32 {s(sT3)}, 5, 0")
    A(f"s_sub_u32 {s(sT3)}, {s(sCG)}, {s(sT3)}")
    A(f"s_lshl_b32 {s(sT3)}, {s(sT3)}, 2")
    A(f"s_add_u32 {s(sT3)}, {s(sT3)}, {s(sWC)}")
    A(f"s_lshl_b32 {s(sT3)}, {s(sT3)}, 3")
    A(f"s_add_u32 {s(sT1)}, {s(sT1)}, {WS_QR:#x}")
    sTT = 36
    A(f"s_lshl_b32 {s(sTT)}, {s(sRB)}, 2")
    A(f"s_lshl_b32 {s(37)}, {s(sWR)}, 1")
    A(f"s_add_u32 {s(sTT)}, {s(sTT)}, {s(37)}")
    vMb, vRb, vC0 = t[2], t[3], t[4]
    A(f"s_lshl_b32 {s(37)}, {s(sTT)}, 10")
    A(f"s_add_u32 {s(37)}, {s(37)}, {s(sT0)}")
    A(f"v_lshl_add_u32 {v(vMb)}, {v(vLane)}, 4, {s(37)}")
    A(f"s_lshl_b32 {s(37)}, {s(sTT)}, 8")
    A(f"s_add_u32 {s(37)}, {s(37)}, {s(sT1)}")
    A(f"v_lshl_add_u32 {v(vRb)}, {v(vLi)}, 3, {s(37)}")
    A(f"v_add_u32 {v(vC0)}, {s(sT3)}, {v(vHb)}")
    A("s_waitcnt lgkmcnt(0)")
    A(f"v_mul_f32 {v(M+1)}, {s(sT2)}, {v(M+1)}")
    A(f"v_mul_f32 {v(M+3)}, {s(sT2)}, {v(M+3)}")
    vH, vE, vA0 = t[5], t[6], t[7]
    vA1 = t[0]; vPk = M+4
    for g in range(4):
        A(f"v_add_u32 {v(vE)}, {2*g}, {v(vC0)}")
        A(f"v_mul_u32_u24 {v(vH)}, 205, {v(vE)}")
        A(f"v_lshrrev_b32 {v(vH)}, 10, {v(vH)}")
        A(f"v_mul_u32_u24 {v(vA0)}, 5, {v(vH)}")
        A(f"v_sub_u32 {v(vE)}, {v(vE)}, {v(vA0)}")
        A(f"v_lshl_add_u32 {v(vA0)}, {v(vH)}, 16, {v(vMb)}")
        A(f"v_lshrrev_b32 {v(t[1])}, 1, {v(vE)}")
        A(f"v_lshl_add_u32 {v(vA0)}, {v(t[1])}, 3, {v(vA0)}")
        A(f"v_lshl_add_u32 {v(vH)}, {v(vH)}, 14, {v(vRb)}")
        A(f"v_cmp_eq_u32 vcc, 4, {v(vE)}")
        A(f"v_add_u32 {v(vA1)}, 1024, {v(vA0)}")
        A(f"v_add_u32 {v(t[1])}, 256, {v(vH)}")
        A(f"v_cndmask_b32 {v(vA0)}, {v(vA0)}, {v(vH)}, vcc")
        A(f"v_cndmask_b32 {v(vA1)}, {v(vA1)}, {v(t[1])}, vcc")
        for ti in range(2):
            for r in range(4):
                x = acc[ti] + 4*g + r
                A(f"v_fma_f32 {v(x)}, -{v(M+2*ti)}, {v(P+4*g+r)}, {v(x)}")
            for r in range(4):
                x = acc[ti] + 4*g + r
                A(f"v_mul_f32 {v(x)}, {v(M+2*ti+1)}, {v(x)}")
            x = acc[ti] + 4*g
            A(f"v_cvt_pk_bf16_f32 {v(x)}, {v(x)}, {v(x+1)}")
            A(f"v_cvt_pk_bf16_f32 {v(x+1)}, {v(x+2)}, {v(x+3)}")
            A(f"buffer_store_dwordx2 {v(x,2)}, {v(vA0 if ti == 0 else vA1)}, {s(sWS,4)}, 0 offen {os.environ.get('ST1','')}")
    ST.finish(sWV, t[0] + (t[0] % 2))
    A("s_endpgm")
    ST.n = n0
    A.label(LV)
    mainloop(True, "v")
    ST.stamp()
    stats_exchange("v")
    ST.stamp()
    A(f"s_lshl_b32 {s(sT0)}, {s(sWC)}, 5")
    A(f"v_add_u32 {v(t[0])}, {s(sT0)}, {v(vLi)}")
    A(f"v_mov_b32 {v(vCs)}, {v(accC)}")
    A(f"s_sub_u32 {s(sT1)}, {s(sCG)}, 10")
    A(f"s_lshl_b32 {s(sT1)}, {s(sT1)}, 7")
    A(f"v_add_u32 {v(t[0])}, {s(sT1)}, {v(t[0])}")
    A(f"v_mul_u32_u24 {v(t[2])}, 3277, {v(t[0])}")
    A(f"v_lshrrev_b32 {v(t[2])}, 16, {v(t[2])}")
    A(f"v_mul_u32_u24 {v(t[3])}, 20, {v(t[2])}")
    A(f"v_sub_u32 {v(t[0])}, {v(t[0])}, {v(t[3])}")
    A(f"v_mul_u32_u24 {v(t[2])}, {128*640}, {v(t[2])}")
    A(f"v_lshl_add_u32 {v(t[2])}, {v(t[0])}, 4, {v(t[2])}")
    A(f"v_mul_u32_u24 {v(t[3])}, 320, {v(vHb)}")
    A(f"v_add_u32 {v(t[2])}, {v(t[2])}, {v(t[3])}")
    A(f"s_lshl_b32 {s(sT0)}, {s(sRB)}, 2")
    A(f"s_lshl_b32 {s(sT1)}, {s(sWR)}, 1")
    A(f"s_add_u32 {s(sT0)}, {s(sT0)}, {s(sT1)}")
    A(f"s_mul_i32 {s(sT0)}, {s(sT0)}, 1280")
    A(f"s_add_u32 {s(sT0)}, {s(sT0)}, {WS_VT:#x}")
    A(f"v_add_u32 {v(t[2])}, {s(sT0)}, {v(t[2])}")
    A(f"s_lshl_b32 {s(sT0)}, {s(sWR)}, 9")
    A(f"v_lshl_add_u32 {v(t[4])}, {v(vHb)}, 5, {s(sT0)}")
    P = Xf[0][0]
    for ti in range(2):
        for gh in range(2):
            for gg in range(2):
                g = gh*2 + gg
                A(f"ds_read_b128 {v(P+8*gg,4)}, {v(t[4])} offset:{10240+ti*256+g*64}")
                A(f"ds_read_b128 {v(P+8*gg+4,4)}, {v(t[4])} offset:{10240+ti*256+g*64+16}")
            A("s_waitcnt lgkmcnt(0)")
            for gg in range(2):
                g = gh*2 + gg
                for r in range(4):
                    x = acc[ti] + 4*g + r
                    A(f"v_fma_f32 {v(x)}, -{v(P+8*gg+2*r)}, {v(vCs)}, {v(x)}")
                for r in range(4):
                    x = acc[ti] + 4*g + r
                    A(f"v_mul_f32 {v(x)}, {v(P+8*gg+2*r+1)}, {v(x)}")
            x = acc[ti] + 8*gh
            for i in range(4):
                A(f"v_cvt_pk_bf16_f32 {v(x+i)}, {v(x+2*i)}, {v(x+2*i+1)}")
            A(f"buffer_store_dwordx4 {v(x,4)}, {v(t[2])}, {s(sWS,4)}, 0 offen offset:{ti*1280+gh*640} {os.environ.get('ST1','')}")
    ST.finish(sWV, t[0] + (t[0] % 2))
    A.label(END)
    A("s_endpgm")
    A.label(LIDLE)
    A(f"v_lshrrev_b32 {v(t[0])}, 4, {v(vLane)}")
    A(f"s_lshl_b32 {s(sT0)}, {s(sRB)}, 7")
    A(f"s_lshl_b32 {s(sT1)}, {s(sWV)}, 4")
    A(f"s_add_u32 s47, {s(sT0)}, {s(sT1)}")
    A(f"v_add_u32 {v(t[0])}, s47, {v(t[0])}")
    A(f"v_mul_u32_u24 {v(t[0])}, 1280, {v(t[0])}")
    A(f"v_and_b32 {v(t[1])}, 15, {v(vLane)}")
    A(f"v_lshl_add_u32 {v(t[0])}, {v(t[1])}, 4, {v(t[0])}")
    for q_ in range(4):
        A(f"s_mov_b32 {s(sT0)}, {q_*4*1280}")
        for c_ in range(5):
            A(f"buffer_load_dwordx4 {v(LA+(q_*5+c_)*4,4)}, {v(t[0])}, {s(sX,4)}, {s(sT0)} offen offset:{c_*256}")
    A(f"v_mov_b32 {v(vOne)}, 0x3f803f80")
    SA = acc[0]
    for i in range(8): A(f"v_mov_b32 {v(SA+i)}, 0")
    for q_ in range(4):
        A(f"s_waitcnt vmcnt({15 - 5*q_})")
        for c_ in range(5):
            for j in range(4):
                x = LA + (q_*5+c_)*4 + j
                A(f"v_dot2c_f32_bf16 {v(SA+2*q_)}, {v(x)}, {v(vOne)}")
                A(f"v_dot2c_f32_bf16 {v(SA+2*q_+1)}, {v(x)}, {v(x)}")
    A("s_nop 2")
    for ror in (8, 4, 2, 1):
        for i in range(8): A(f"v_add_f32_dpp {v(SA+i)}, {v(SA+i)}, {v(SA+i)} row_ror:{ror} row_mask:0xf bank_mask:0xf")
    for q_ in range(4):
        m, q2 = SA + 2*q_, SA + 2*q_ + 1
        A(f"v_mul_f32 {v(m)}, {f32bits(1.0/D):#x}, {v(m)}")
        A(f"v_mul_f32 {v(q2)}, {f32bits(1.0/D):#x}, {v(q2)}")
        A(f"v_fma_f32 {v(q2)}, -{v(m)}, {v(m)}, {v(q2)}")
        A(f"v_max_f32 {v(q2)}, 0, {v(q2)}")
        A(f"v_add_f32 {v(q2)}, {f32bits(EPS):#x}, {v(q2)}")
        A(f"v_rsq_f32 {v(q2)}, {v(q2)}")
    A(f"v_lshrrev_b32 {v(t[0])}, 4, {v(vLane)}")
    A(f"v_lshlrev_b32 {v(t[0])}, 3, {v(t[0])}")
    A(f"s_lshl_b32 {s(sT0)}, s47, 3")
    A(f"s_add_u32 {s(sT0)}, {s(sT0)}, {WS_ST1:#x}")
    A(f"s_mov_b32 exec_lo, 0x00010001")
    A(f"s_mov_b32 exec_hi, 0x00010001")
    for q_ in range(4):
        A(f"buffer_store_dwordx2 {v(SA+2*q_,2)}, {v(t[0])}, {s(sWS,4)}, {s(sT0)} offen offset:{q_*32} sc1")
    A(f"s_mov_b64 exec, -1")
    A("s_waitcnt vmcnt(0)")
    A("s_barrier")
    Lq = A.newlabel(f"{name}_idl")
    A(f"s_cmp_eq_u32 {s(sWV)}, 0")
    A(f"s_cbranch_scc0 {Lq}")
    write_flag()
    A.label(Lq)
    A("s_endpgm")
    return A.text(), kernel_desc(name, R.hi), (256, 512, 131072 + 4096)
```

```python
from asmlib import *
KA_X, KA_WQKV, KA_WO, KA_BX, KA_W1, KA_W3, KA_W2, KA_OUT, KA_DBG, KA_WS = [8*i for i in range(10)]
T = 2048; D = 640; H = 32; DH = 20; F = 1728
WS_QM = 0x000000
WS_QR = 0x200000
WS_KM = 0x280000
WS_KR = 0x480000
WS_VT = 0x500000
WS_OM = 0x780000
WS_OR = 0x980000
WS_H  = 0xA00000
WS_G  = 0xC80000
WS_A2 = 0x1340000
WS_W13F = 0x1400000
WS_W2F = 0x1840000
WS_WOF = 0x1A60000
WS_CS  = 0x1B30000
WS_ST2 = 0x1B40000
WS_ST1 = 0x1B80000
WS_CSP = 0x1B90000
WS_FLG2 = 0x1BC0000
WS_FLG3 = 0x1BC8000
WS_FLG4 = 0x1BD0000
WS_CNTRP = 0x1BD8000
WS_FLG1 = 0x1BE0000
WS_EPOCH = 0x1BE8000
WS_SIZE = 0x1C00000
SZ_X = T*D*2; SZ_WQKV = D*3*D*2; SZ_WO = D*D*2; SZ_W1 = D*F*2; SZ_W2 = F*D*2; SZ_OUT = T*D*2
QSCALE = (DH ** -0.5) * 1.4426950408889634
EPS = 1e-5

def srd(A, sreg, ptr_sreg, size):
    A(f"s_mov_b32 {s(sreg)}, {s(ptr_sreg)}")
    A(f"s_and_b32 {s(sreg+1)}, {s(ptr_sreg+1)}, 0xffff")
    A(f"s_mov_b32 {s(sreg+2)}, {size:#x}")
    A(f"s_mov_b32 {s(sreg+3)}, 0x20000")

import os
STAMP = os.environ.get("STAMP", "0") == "1"
WS_STAMP = 0x1F00000
class Stamper:
    def __init__(self, A, wsptr, base=60):
        self.A = A; self.n = 0; self.base = base; self.ws = wsptr
    names = []
    def stamp(self, tag=None):
        if not STAMP: return
        if MERGED and getattr(self, "mg", False):
            k = len(Stamper.names); Stamper.names.append(f"{self.mg}:{tag or self.n}"); self.n += 1
            if k == 0:
                self.A("s_memrealtime s[92:93]"); self.A("s_waitcnt lgkmcnt(0)"); self.A("v_writelane_b32 v255, s92, 62")
            self.A("s_memtime s[92:93]")
            self.A("s_waitcnt lgkmcnt(0)")
            self.A(f"v_writelane_b32 v255, s92, {k}")
            return
        if self.n == 0: self.A("s_memrealtime s[90:91]")
        self.A(f"s_memtime {s(self.base+2*self.n,2)}")
        self.A("s_waitcnt lgkmcnt(0)")
        self.n += 1
    def finish(self, sWV, vtmp, koff=0):
        if not STAMP: return
        A = self.A
        if MERGED and getattr(self, "mg", False):
            self.stamp("end")
            if self.mg == "p5":
                L = f"mstamp_skip"
                A("s_memrealtime s[92:93]"); A("s_waitcnt lgkmcnt(0) vmcnt(0)"); A("v_writelane_b32 v255, s92, 63")
                A(f"s_cmp_eq_u32 {s(sWV)}, 0")
                A(f"s_cbranch_scc0 {L}")
                A(f"s_lshl_b32 s58, s2, 8")
                A(f"s_add_u32 s58, s58, {WS_STAMP + 0x40000:#x}")
                A(f"s_add_u32 s58, {s(self.ws)}, s58")
                A(f"s_addc_u32 s59, {s(self.ws+1)}, 0")
                A(f"v_and_b32 {v(vtmp)}, 63, v0")
                A(f"v_lshlrev_b32 {v(vtmp)}, 2, {v(vtmp)}")
                A(f"global_store_dword {v(vtmp)}, v255, s[58:59]")
                A.label(L)
                open("mstamp_names.txt", "w").write("\n".join(Stamper.names))
            return
        self.stamp()
        A("s_memrealtime s[92:93]")
        Stamper.cnt = getattr(Stamper, "cnt", 0) + 1
        L = f"stamp_skip_k{koff}_{Stamper.cnt}"
        A("s_waitcnt lgkmcnt(0) vmcnt(0)")
        A(f"s_cmp_eq_u32 {s(sWV)}, 0")
        A(f"s_cbranch_scc0 {L}")
        A(f"s_lshl_b32 s58, s2, 6")
        A(f"s_add_u32 s58, s58, {WS_STAMP + koff*0x10000:#x}")
        A(f"s_add_u32 s58, {s(self.ws)}, s58")
        A(f"s_addc_u32 s59, {s(self.ws+1)}, 0")
        A(f"v_mov_b32 {v(vtmp+1)}, 0")
        for i in range(self.n):
            if i == 0:
                A(f"v_mov_b32 {v(vtmp)}, {s(self.base)}")
            else:
                A(f"s_sub_u32 {s(self.base+2*i)}, {s(self.base+2*i)}, {s(self.base)}")
                A(f"v_mov_b32 {v(vtmp)}, {s(self.base+2*i)}")
            A(f"global_store_dword {v(vtmp+1)}, {v(vtmp)}, s[58:59] offset:{4*i}")
            A("s_nop 1")
        A("s_sub_u32 s92, s92, s90")
        A(f"v_mov_b32 {v(vtmp)}, s92")
        A(f"global_store_dword {v(vtmp+1)}, {v(vtmp)}, s[58:59] offset:60")
        A(f"v_mov_b32 {v(vtmp)}, s90")
        A(f"global_store_dword {v(vtmp+1)}, {v(vtmp)}, s[58:59] offset:56")
        A.label(L)


def rot_init(A, sPh, sIdx, nst, t0, t1):
    A(f"s_lshr_b32 {s(t0)}, s2, 3")
    A(f"s_and_b32 {s(t1)}, {s(t0)}, 7")
    A(f"s_lshl_b32 {s(t1)}, {s(t1)}, 2")
    A(f"s_lshr_b32 {s(t0)}, {s(t0)}, 3")
    A(f"s_mul_i32 {s(t0)}, {s(t0)}, 9")
    A(f"s_add_u32 {s(t0)}, {s(t0)}, {s(t1)}")
    A(f"s_and_b32 {s(t0)}, {s(t0)}, 31")
    A(f"s_mul_i32 {s(t0)}, {s(t0)}, {nst}")
    A(f"s_lshr_b32 {s(sPh)}, {s(t0)}, 5")
def rot_next(A, sPh, nst):
    A(f"s_add_u32 {s(sPh)}, {s(sPh)}, 1")
    A(f"s_cmp_eq_u32 {s(sPh)}, {nst}")
    A(f"s_cselect_b32 {s(sPh)}, 0, {s(sPh)}")


def touch_loop(A, name, items, sWS, vdst, scnt, stmp, maxfly=2):
    for k, (creg, cval, vaddr, srdreg, soff, mask) in enumerate(items):
        L = A.newlabel(f"{name}_t")
        if creg is not None:
            A(f"s_cmp_eq_u32 {s(creg)}, {cval}")
            A(f"s_cbranch_scc0 {L}")
        A(f"s_waitcnt vmcnt({maxfly-1})")
        A(f"s_mov_b32 {s(stmp)}, {soff:#x}")
        if mask: A(f"s_mov_b64 exec, {mask}")
        A(f"buffer_load_dword {v(vdst)}, {v(vaddr)}, {s(srdreg,4)}, {s(stmp)} offen")
        if mask: A(f"s_mov_b64 exec, -1")
        A.label(L)


def sched_seq(N, S, Ld=1):
    G = N // S
    assert G * S == N
    mode = os.environ.get("SCHED", "0")
    if mode == "1":
        return [(i, None) for i in range(S)] + [(S*g, i) for g in range(1, G) for i in range(S)]
    if mode == "2":
        rest = [(S*g, i) for g in range(G) for i in range(S)]
        return [(i, None) for i in range(S)] + [(S*g, i) for g in range(1, G) for i in range(S)] if False else [(0, None)] + [(0, i) for i in range(1, S)] and _seq2(N, S)
    seq = [(S*g, 0) for g in range(min(Ld, G))]
    for g in range(G):
        if g + Ld < G: seq.append((S*(g+Ld), 0))
        for i in range(1, S): seq.append((S*g, i))
    assert len(seq) == N
    return seq
def _seq2(N, S):
    return [(i, None) for i in range(S)] + [(S*g, i) for g in range(1, N//S) for i in range(S)]
def sched_init(A, sU, S, t0, t1, local_mask=None):
    A(f"s_lshr_b32 {s(t0)}, s2, 3")
    if local_mask is not None:
        A(f"s_and_b32 {s(t0)}, {s(t0)}, {local_mask}")
    else:
        A(f"s_and_b32 {s(t1)}, {s(t0)}, 7")
        A(f"s_lshr_b32 {s(t0)}, {s(t0)}, 3")
        A(f"s_add_u32 {s(t0)}, {s(t0)}, {s(t1)}")
    if S & (S-1) == 0:
        A(f"s_and_b32 {s(sU)}, {s(t0)}, {S-1}")
    else:
        assert S == 3 or S == 5
        m = {3: 86, 5: 52}[S]
        A(f"s_mul_i32 {s(t1)}, {s(t0)}, {m}")
        A(f"s_lshr_b32 {s(t1)}, {s(t1)}, 8")
        A(f"s_mul_i32 {s(t1)}, {s(t1)}, {S}")
        A(f"s_sub_u32 {s(sU)}, {s(t0)}, {s(t1)}")
def sched_phys(A, sPh, sU, S, base, i):
    if i is None:
        A(f"s_mov_b32 {s(sPh)}, {base}")
    elif i == 0:
        A(f"s_add_u32 {s(sPh)}, {s(sU)}, {base}")
    else:
        A(f"s_add_u32 {s(sPh)}, {s(sU)}, {i}")
        A(f"s_cmp_ge_u32 {s(sPh)}, {S}")
        A(f"s_cselect_b32 s100, {S}, 0")
        A(f"s_sub_u32 {s(sPh)}, {s(sPh)}, s100")
        if base: A(f"s_add_u32 {s(sPh)}, {s(sPh)}, {base}")


def code_touch(A, name, targets, sWV, vLane, vtmp, spair, stmp):
    if os.environ.get("NO_CTOUCH") or os.environ.get("ONLY12") and name.startswith("p2"): return
    L = A.newlabel(f"{name}_ct"); P = A.newlabel(f"{name}_pc")
    A(f"s_cmp_eq_u32 {s(sWV)}, 7")
    A(f"s_cbranch_scc0 {L}")
    first, last = targets
    A(f"s_getpc_b64 {s(spair,2)}")
    A.label(P)
    A(f"s_add_u32 {s(spair)}, {s(spair)}, {first}-{P}")
    A(f"s_addc_u32 {s(spair+1)}, {s(spair+1)}, 0")
    A(f"s_lshr_b32 {s(stmp)}, s2, 3")
    A(f"s_lshl_b32 {s(stmp)}, {s(stmp)}, 13")
    A(f"s_cmp_ge_u32 {s(stmp)}, {last}-{first}")
    A(f"s_cbranch_scc1 {L}")
    A(f"v_lshl_add_u32 {v(vtmp)}, {v(vLane)}, 7, {s(stmp)}")
    A(f"v_min_u32 {v(vtmp)}, {last}-{first}-4, {v(vtmp)}")
    A(f"global_load_dword {v(vtmp)}, {v(vtmp)}, {s(spair,2)}")
    A.label(L)


KNAME = "sequential_preLN__softmax_full_mha__glu_gated_swiglu__prompt_kernel"
ONE = os.environ.get("ONE", "0") == "1"
MERGED = os.environ.get("MERGED", "0") == "1" or ONE
SC = " sc1" if MERGED else ""
LOCAL = MERGED and os.environ.get("LOCAL", "0") == "1"
SCS = "" if LOCAL else SC
EARLY = MERGED and os.environ.get("EARLY", "0") == "1"

def mg_publish(A, name, sWS, sWV, sId, base, vt0, vt1, stmp, ST=None):
    L = A.newlabel(f"{name}_pub")
    if ST and os.environ.get("MG_DIAG"): ST.stamp()
    A("s_waitcnt vmcnt(0)")
    if ST and os.environ.get("MG_DIAG"): ST.stamp()
    if barrier: A("s_barrier")
    A(f"s_cmp_eq_u32 {s(sWV)}, 0")
    A(f"s_cbranch_scc0 {L}")
    A(f"s_lshl_b32 {s(stmp)}, {s(sId)}, 7")
    A(f"s_add_u32 {s(stmp)}, {s(stmp)}, {base:#x}")
    A(f"v_mov_b32 {v(vt0)}, 0")
    A(f"v_mov_b32 {v(vt1)}, 1")
    A(f"s_mov_b64 exec, 1")
    A(f"buffer_store_dword {v(vt1)}, {v(vt0)}, {s(sWS,4)}, {s(stmp)} offen sc1")
    A(f"s_mov_b64 exec, -1")
    A.label(L)

def mg_wait(A, name, sWS, sWV, vAddr, vExp, vVal, mask, scnt, ST=None, hi="0", barrier=True):
    L = A.newlabel(f"{name}_wd"); Lp = A.newlabel(f"{name}_wp")
    if ST and os.environ.get("MG_DIAG"): ST.stamp()
    A(f"s_cmp_eq_u32 {s(sWV)}, 0")
    A(f"s_cbranch_scc0 {L}")
    A(f"s_mov_b32 {s(scnt)}, 0")
    A(f"s_mov_b32 exec_lo, {mask}")
    A(f"s_mov_b32 exec_hi, {hi}")
    A.label(Lp)
    A(f"buffer_load_dword {v(vVal)}, {v(vAddr)}, {s(sWS,4)}, 0 offen sc1")
    A("s_waitcnt vmcnt(0)")
    A(f"v_cmp_eq_u32 vcc, {v(vVal)}, {v(vExp)}")
    A(f"s_cmp_eq_u64 vcc, exec")
    A(f"s_cbranch_scc1 {L}_ok")
    A("s_sleep 1")
    A(f"s_add_u32 {s(scnt)}, {s(scnt)}, 1")
    A(f"s_cmp_lt_u32 {s(scnt)}, 0x100000")
    A(f"s_cbranch_scc1 {Lp}")
    A.label(f"{L}_ok")
    A(f"s_mov_b64 exec, -1")
    A.label(L)
    if ST and os.environ.get("MG_DIAG"): ST.stamp()
    if barrier: A("s_barrier")


S_PID, S_PVAL = 94, 95
S_T = 101
FLAGVAL = "s101" if ONE else "1"
S_DB = 88
DBG_T, DBG_CNT, DBG_ROW = 0, 8, 16
def mg_set_pending(A, sId):
    A(f"s_mov_b32 {s(S_PID)}, {s(sId)}")
    A(f"s_mov_b32 {s(S_PVAL)}, 1")
def mg_publish_pending(A, name, sWS, sWV, base, nafter, vt0, vt1, stmp, ST=None):
    L = A.newlabel(f"{name}_pub")
    if ST and os.environ.get("MG_DIAG"): ST.stamp("pre-drain")
    A(f"s_waitcnt vmcnt({nafter})")
    if ST and os.environ.get("MG_DIAG"): ST.stamp("drained")
    A("s_barrier")
    A(f"s_cmp_eq_u32 {s(sWV)}, 0")
    A(f"s_cbranch_scc0 {L}")
    A(f"s_cmp_eq_u32 {s(S_PVAL)}, 1")
    A(f"s_cbranch_scc0 {L}")
    A(f"s_lshl_b32 {s(stmp)}, {s(S_PID)}, 7")
    A(f"s_add_u32 {s(stmp)}, {s(stmp)}, {base:#x}")
    A(f"v_mov_b32 {v(vt0)}, 0")
    A(f"v_mov_b32 {v(vt1)}, {FLAGVAL}")
    A(f"s_mov_b64 exec, 1")
    A(f"buffer_store_dword {v(vt1)}, {v(vt0)}, {s(sWS,4)}, {s(stmp)} offen{SCS}")
    A(f"s_mov_b64 exec, -1")
    A.label(L)
    A(f"s_mov_b32 {s(S_PVAL)}, 0")

class VQ:
    def __init__(self): self.q = []
    def add(self, tag, n=1): self.q += [tag] * n
    def after(self, *tags):
        last = max(i for i, x in enumerate(self.q) if x in tags)
        return len(self.q) - 1 - last


def early_w35(which, sWS, sWV):
    NS = 10 if which == 3 else 27
    n = 13 if which == 3 else 15
    base = WS_WOF if which == 3 else WS_W2F
    ngc = ["s_lshr_b32 s96, s2, 5"] if LOCAL else ["s_and_b32 s96, s2, 1", "s_lshl_b32 s96, s96, 2", "s_lshr_b32 s97, s2, 6", "s_add_u32 s96, s96, s97"]
    setup = ngc + [
             f"s_mul_i32 s96, s96, {NS*10240}", f"s_lshl_b32 s97, {s(sWV)}, 10", "s_add_u32 s96, s96, s97",
             f"s_add_u32 s96, s96, {base:#x}", "v_and_b32 v253, 63, v0", "v_lshlrev_b32 v253, 4, v253"]
    loads = [[f"s_add_u32 m0, s97, {i*8192}", f"s_add_u32 s98, s96, {i*8192}",
              f"buffer_load_dwordx4 v253, {s(sWS,4)}, s98 offen sc1 lds"] for i in range(n)]
    return setup, loads

def early_w4(sWS, sWV, nst, SLOT):
    if LOCAL:
        cgc = ["s_lshr_b32 s96, s2, 4", "s_cmp_ge_u32 s96, 14", "s_cselect_b32 s99, 1, 0"]
    else:
        cgc = ["s_and_b32 s96, s2, 3", "s_lshr_b32 s97, s2, 6",
             "s_cmp_lt_u32 s96, 2", "s_cselect_b32 s98, 4, 3",
             "s_cmp_ge_u32 s97, s98", "s_cselect_b32 s99, 1, 0",
             "s_lshl_b32 s98, s96, 2", "s_cmp_eq_u32 s96, 3", "s_cselect_b32 s98, 11, s98",
             "s_add_u32 s96, s98, s97"]
    setup = cgc + [
             "s_lshl_b32 s96, s96, 2", f"s_lshr_b32 s97, {s(sWV)}, 1", "s_add_u32 s96, s96, s97", "s_mul_i32 s96, s96, 40",
             f"s_and_b32 s97, {s(sWV)}, 1", "s_add_u32 s96, s96, s97", "s_lshl_b32 s96, s96, 11", f"s_add_u32 s96, s96, {WS_W13F:#x}",
             "s_cmp_eq_u32 s99, 1", "s_cselect_b32 s96, 0x7ff00000, s96",
             f"s_lshl_b32 s97, {s(sWV)}, 11", "v_and_b32 v253, 63, v0", "v_lshlrev_b32 v253, 4, v253"]
    loads = [[f"s_add_u32 m0, s97, {st*SLOT + 8192 + m_*1024}", f"s_add_u32 s98, s96, {st*4096 + m_*1024}",
              f"buffer_load_dwordx4 v253, {s(sWS,4)}, s98 offen sc1 lds"] for st in range(nst) for m_ in range(2)]
    return setup, loads

def capture(A, fn, *args):
    n0 = len(A.lines); fn(*args); out = [x.strip() for x in A.lines[n0:]]; del A.lines[n0:]; return out
def weave_groups(A, body, groups):
    n = len(groups)
    if n == 0:
        for x in body: A(x)
        return
    step = max(1, len(body) // (n + 1))
    k = 0
    for i, x in enumerate(body):
        A(x)
        if k < n and (i + 1) % step == 0:
            for y in groups[k]: A(y)
            k += 1
    for g in groups[k:]:
        for y in g: A(y)


def need_tag(A, name, vt):
    L = A.newlabel(f"{name}_tg"); Lp = A.newlabel(f"{name}_tgp")
    A(f"s_cmp_lg_u32 {s(S_T)}, 0")
    A(f"s_cbranch_scc1 {L}")
    A(f"s_mov_b32 s99, 0")
    A.label(Lp)
    A(f"v_mov_b32 {v(vt)}, {DBG_T}")
    A(f"buffer_load_dword {v(vt)}, {v(vt)}, {s(S_DB,4)}, 0 offen sc1")
    A("s_waitcnt vmcnt(0)")
    A(f"v_readfirstlane_b32 {s(S_T)}, {v(vt)}")
    A(f"s_add_u32 s99, s99, 1")
    A(f"s_cmp_ge_u32 s99, 0x100000")
    A(f"s_cbranch_scc1 {L}")
    A(f"s_cmp_eq_u32 {s(S_T)}, 0")
    A(f"s_cbranch_scc1 {Lp}")
    A.label(L)
```

```python
from common import *
import os

def gen_p1(name="p1_qkv_kernel"):
    A = Asm()
    A.raw(kernel_header(KNAME if ONE else name))
    END = "mega_END" if ONE else f"{name}_END"
    DONE = f"{name}_done"
    sX, sW, sWS = 8, 12, 16
    sRB, sCG, sWV, sWR, sWC, sM, sXo, sWo = 20, 21, 22, 23, 28, 29, 30, 31
    sT0, sT1, sT2, sT3 = 32, 33, 34, 35
    sPh = 38
    ST = Stamper(A, 24)
    if ONE: ST.mg = 'p1'
    ST.stamp()
    A(f"s_cmp_ge_u32 s2, 256")
    A(f"s_cbranch_scc1 {END}")
    A(f"s_load_dwordx4 s[4:7], s[0:1], {KA_X}")
    A(f"s_load_dwordx2 s[24:25], s[0:1], {KA_WS}")
    A(f"s_and_b32 {s(sT0)}, s2, 7")
    A(f"s_lshr_b32 {s(sT1)}, s2, 3")
    A(f"s_lshr_b32 {s(sT2)}, {s(sT0)}, 2")
    A(f"s_lshl_b32 {s(sT2)}, {s(sT2)}, 3")
    A(f"s_and_b32 {s(sT3)}, {s(sT1)}, 7")
    A(f"s_add_u32 {s(sRB)}, {s(sT2)}, {s(sT3)}")
    A(f"s_and_b32 {s(sT2)}, {s(sT0)}, 3")
    A(f"s_lshl_b32 {s(sT2)}, {s(sT2)}, 2")
    A(f"s_lshr_b32 {s(sT3)}, {s(sT1)}, 3")
    A(f"s_add_u32 {s(sCG)}, {s(sT2)}, {s(sT3)}")
    A(f"s_load_dwordx2 s[26:27], s[0:1], {KA_DBG}")
    R = Regs(1, 256)
    vLane = R.alloc(); vLi = R.alloc(); vHb = R.alloc()
    vX0 = R.alloc(); vX1 = R.alloc(); vW0 = R.alloc(); vW1 = R.alloc()
    vXA = R.alloc(4, 1); vXB = R.alloc(4, 1); vWA = R.alloc(); vWB = R.alloc()
    vOne = R.alloc()
    vSt = R.alloc(4, 2)
    vCs = R.alloc()
    accC = R.alloc(16, 4); ONE4 = R.alloc(4, 4)
    LA = R.alloc(80, 4)
    vFl = R.alloc(); vNeed = R.alloc(); SL = R.alloc(6, 2)
    sDB = 40; sOK = 44; sSb = 45; sCb = 46
    STX = 131072
    t = [R.alloc() for _ in range(8)]
    acc = [R.alloc(16, 4), R.alloc(16, 4)]
    Xf = [[R.alloc(4, 4), R.alloc(4, 4)] for _ in range(2)]
    Wf = [R.alloc(4, 4) for _ in range(2)]
    A(f"v_lshrrev_b32 {v(t[0])}, 6, v0")
    A(f"v_and_b32 {v(vLane)}, 63, v0")
    A(f"v_readfirstlane_b32 {s(sWV)}, {v(t[0])}")
    A(f"v_and_b32 {v(vLi)}, 31, {v(vLane)}")
    A(f"v_lshrrev_b32 {v(vHb)}, 5, {v(vLane)}")
    A(f"s_lshr_b32 {s(sWR)}, {s(sWV)}, 2")
    A(f"s_and_b32 {s(sWC)}, {s(sWV)}, 3")
    A(f"s_lshl_b32 {s(sM)}, {s(sWV)}, 11")
    code_touch(A, name, ("p2_kernel", "p5_kernel_CODE_END" if ONE else "p2_kernel_CODE_END"), sWV, vLane, R.alloc(), 50, 52)
    A(f"s_lshl_b32 {s(sT0)}, {s(sRB)}, 7")
    A(f"s_lshl_b32 {s(sT1)}, {s(sWV)}, 4")
    A(f"s_add_u32 {s(sT0)}, {s(sT0)}, {s(sT1)}")
    A(f"v_lshrrev_b32 {v(t[0])}, 3, {v(vLane)}")
    A(f"v_add_u32 {v(t[0])}, {s(sT0)}, {v(t[0])}")
    A(f"v_mul_u32_u24 {v(t[0])}, 1280, {v(t[0])}")
    A(f"v_and_b32 {v(t[1])}, 7, {v(vLane)}")
    A(f"v_lshrrev_b32 {v(t[2])}, 4, {v(vLane)}")
    A(f"v_xor_b32 {v(t[1])}, {v(t[1])}, {v(t[2])}")
    A(f"v_lshl_add_u32 {v(vX0)}, {v(t[1])}, 4, {v(t[0])}")
    A(f"v_xor_b32 {v(t[1])}, 4, {v(t[1])}")
    A(f"v_lshl_add_u32 {v(vX1)}, {v(t[1])}, 4, {v(t[0])}")
    A(f"v_add_u32 {v(vX1)}, 10240, {v(vX1)}")
    A(f"s_lshl_b32 {s(sT1)}, {s(sWV)}, 3")
    A(f"v_add_u32 {v(t[0])}, {s(sT1)}, {v(t[2])}")
    A(f"v_mul_u32_u24 {v(t[0])}, 3840, {v(t[0])}")
    A(f"s_lshl_b32 {s(sT2)}, {s(sCG)}, 8")
    A(f"v_add_u32 {v(t[0])}, {s(sT2)}, {v(t[0])}")
    A(f"v_bfe_u32 {v(t[1])}, {v(vLane)}, 2, 2")
    A(f"v_xor_b32 {v(t[1])}, {v(t[1])}, {v(t[2])}")
    A(f"v_lshl_add_u32 {v(t[0])}, {v(t[1])}, 6, {v(t[0])}")
    A(f"v_and_b32 {v(t[1])}, 3, {v(vLane)}")
    A(f"v_lshl_add_u32 {v(vW0)}, {v(t[1])}, 4, {v(t[0])}")
    A(f"v_add_u32 {v(vW1)}, 15360, {v(vW0)}")
    A("s_waitcnt lgkmcnt(0)")
    srd(A, sX, 4, SZ_X); srd(A, sW, 6, SZ_WQKV); srd(A, sWS, 24, WS_SIZE); srd(A, sDB, 26, 256)
    if ONE:
        srd(A, S_DB, 26, 256)
        A(f"s_mov_b32 {s(S_T)}, 0")
        A(f"s_mov_b32 {s(S_PVAL)}, 0")
    if MERGED and not ONE:
        Lz = A.newlabel(f"{name}_zf")
        A(f"s_cmp_eq_u32 {s(sWV)}, 1")
        A(f"s_cbranch_scc0 {Lz}")
        A(f"v_lshlrev_b32 {v(t[0])}, 15, {v(vLane)}")
        A(f"s_lshl_b32 {s(sT0)}, s2, 7")
        A(f"s_add_u32 {s(sT0)}, {s(sT0)}, {WS_FLG2:#x}")
        A(f"v_mov_b32 {v(t[1])}, 0")
        A(f"s_mov_b64 exec, 0xf")
        A(f"buffer_store_dword {v(t[1])}, {v(t[0])}, {s(sWS,4)}, {s(sT0)} offen")
        A(f"s_mov_b64 exec, -1")
        A.label(Lz)
    LIDLE = f"{name}_idle"
    A(f"s_cmp_ge_u32 {s(sCG)}, 15")
    A(f"s_cbranch_scc1 {LIDLE}")
    LT1 = None
    if ONE:
        LT0 = A.newlabel(f"{name}_t0")
        A(f"s_cmp_eq_u32 s2, 0")
        A(f"s_cbranch_scc0 {LT0}")
        A(f"s_cmp_eq_u32 {s(sWV)}, 2")
        A(f"s_cbranch_scc0 {LT0}")
        A(f"v_mov_b32 {v(t[6])}, {WS_EPOCH:#x}")
        A(f"buffer_load_dword {v(t[7])}, {v(t[6])}, {s(sWS,4)}, 0 offen sc1")
        A("s_waitcnt vmcnt(0)")
        A(f"v_add_u32 {v(t[7])}, 1, {v(t[7])}")
        A(f"v_max_u32 {v(t[7])}, 1, {v(t[7])}")
        A(f"s_mov_b64 exec, 1")
        A(f"buffer_store_dword {v(t[7])}, {v(t[6])}, {s(sWS,4)}, 0 offen sc1")
        A(f"v_mov_b32 {v(t[6])}, {DBG_T}")
        A(f"buffer_store_dword {v(t[7])}, {v(t[6])}, {s(sDB,4)}, 0 offen sc1")
        A(f"s_mov_b64 exec, -1")
        A("s_nop 1")
        A.label(LT0)
    def write_flag():
        A(f"v_mov_b32 {v(t[6])}, 0")
        A(f"v_mov_b32 {v(t[7])}, 1")
        A(f"s_mov_b64 exec, 1")
        A(f"buffer_store_byte {v(t[7])}, {v(t[6])}, {s(sDB,4)}, {s(sRB)} offen offset:{DBG_ROW if ONE else 0} sc1")
        A(f"s_mov_b64 exec, -1")
    SS = int(os.environ.get("S1", 5))
    seq = sched_seq(10, SS, int(os.environ.get("LD", 1)))
    sU = 39
    sched_init(A, sU, SS, sT0, sT1)
    def dma(st):
        base = (st % 4) * 32768
        sched_phys(A, sPh, sU, SS, *seq[st])
        A(f"s_lshl_b32 {s(sXo)}, {s(sPh)}, 7")
        A(f"s_add_u32 m0, {s(sM)}, {base}")
        A(f"s_mul_i32 {s(sWo)}, {s(sPh)}, {64*3840}")
        A(f"buffer_load_dwordx4 {v(vX0)}, {s(sX,4)}, {s(sXo)} offen lds")
        A(f"s_add_u32 m0, {s(sM)}, {base+1024}")
        A("s_nop 0")
        A(f"buffer_load_dwordx4 {v(vX1)}, {s(sX,4)}, {s(sXo)} offen lds")
        A(f"s_add_u32 m0, {s(sM)}, {base+16384}")
        A("s_nop 0")
        A(f"buffer_load_dwordx4 {v(vW0)}, {s(sW,4)}, {s(sWo)} offen lds")
        A(f"s_add_u32 m0, {s(sM)}, {base+16384+1024}")
        A("s_nop 0")
        A(f"buffer_load_dwordx4 {v(vW1)}, {s(sW,4)}, {s(sWo)} offen lds")
    ST.stamp()
    DIST = int(os.environ.get('P1_DIST', 2))
    for st in range(DIST): dma(st)
    for i in range(4): A(f"v_mov_b32 {v(ONE4+i)}, 0x3f803f80")
    A(f"s_lshl_b32 {s(sT0)}, {s(sWR)}, 6")
    A(f"v_add_u32 {v(t[0])}, {s(sT0)}, {v(vLi)}")
    A(f"v_lshlrev_b32 {v(t[0])}, 7, {v(t[0])}")
    A(f"v_bfe_u32 {v(t[1])}, {v(vLi)}, 1, 3")
    A(f"v_xor_b32 {v(t[1])}, {v(t[1])}, {v(vHb)}")
    for ks in range(4):
        A(f"v_xor_b32 {v(t[2])}, {2*ks}, {v(t[1])}")
        A(f"v_lshl_add_u32 {v(vXA+ks)}, {v(t[2])}, 4, {v(t[0])}")
        A(f"v_add_u32 {v(vXB+ks)}, 0x10000, {v(vXA+ks)}")
    A(f"v_bfe_u32 {v(t[0])}, {v(vLane)}, 2, 2")
    A(f"v_lshl_add_u32 {v(t[1])}, {v(vHb)}, 3, {v(t[0])}")
    A(f"v_lshlrev_b32 {v(t[1])}, 8, {v(t[1])}")
    A(f"v_xor_b32 {v(t[0])}, {s(sWC)}, {v(t[0])}")
    A(f"v_lshl_add_u32 {v(t[1])}, {v(t[0])}, 6, {v(t[1])}")
    A(f"v_bfe_u32 {v(t[0])}, {v(vLane)}, 4, 1")
    A(f"v_lshl_add_u32 {v(t[1])}, {v(t[0])}, 5, {v(t[1])}")
    A(f"v_and_b32 {v(t[0])}, 3, {v(vLane)}")
    A(f"v_lshl_add_u32 {v(t[1])}, {v(t[0])}, 3, {v(t[1])}")
    A(f"v_add_u32 {v(vWA)}, 16384, {v(t[1])}")
    A(f"v_add_u32 {v(vWB)}, 0x10000, {v(vWA)}")

    def reads(st, ks):
        slot = st % 4; b = ks % 2
        hiX = vXB if slot >= 2 else vXA; hiW = vWB if slot >= 2 else vWA
        off = (slot % 2) * 32768
        A(f"ds_read_b128 {v(Xf[b][0],4)}, {v(hiX+ks)} offset:{off}")
        A(f"ds_read_b128 {v(Xf[b][1],4)}, {v(hiX+ks)} offset:{off+4096}")
        A(f"ds_read_b64_tr_b16 {v(Wf[b],2)}, {v(hiW)} offset:{off+ks*4096}")
        A(f"ds_read_b64_tr_b16 {v(Wf[b]+2,2)}, {v(hiW)} offset:{off+ks*4096+1024}")

    assert DIST == 2
    def poll_issue():
        A(f"s_and_b32 {s(sT0)}, {s(sRB)}, 12")
        if ONE:
            A(f"s_add_u32 {s(sT0)}, {s(sT0)}, {DBG_ROW}")
            A(f"v_mov_b32 {v(vFl)}, {s(sT0)}")
            A(f"v_cmp_eq_u32 vcc, 1, {v(vLane)}")
            A(f"v_mov_b32 {v(t[7])}, {DBG_T}")
            A("s_nop 0")
            A(f"v_cndmask_b32 {v(vFl)}, {v(vFl)}, {v(t[7])}, vcc")
            A(f"s_cmp_eq_u32 {s(sWR)}, 1")
            A(f"s_cselect_b64 vcc, -1, 0")
        else:
            A(f"v_mov_b32 {v(vFl)}, {s(sT0)}")
        A(f"buffer_load_dword {v(vFl)}, {v(vFl)}, {s(sDB,4)}, 0 offen sc1")
    def poll_eval():
        if ONE: A(f"v_readlane_b32 {s(S_T)}, {v(vFl)}, 1")
        A(f"v_readfirstlane_b32 {s(sT0)}, {v(vFl)}")
        A(f"s_and_b32 {s(sT1)}, {s(sRB)}, 3")
        A(f"s_lshl_b32 {s(sT1)}, {s(sT1)}, 3")
        A(f"s_lshr_b32 {s(sT0)}, {s(sT0)}, {s(sT1)}")
        A(f"s_and_b32 {s(sOK)}, {s(sT0)}, 1")
    def stat_loads():
        A(f"s_lshl_b32 {s(sSb)}, {s(sRB)}, 10")
        A(f"s_add_u32 {s(sSb)}, {s(sSb)}, {WS_ST1:#x}")
        A(f"s_cmp_eq_u32 {s(sOK)}, 1")
        A(f"s_cselect_b32 {s(sSb)}, {s(sSb)}, 0")
        A(f"v_and_b32 {v(t[6])}, 127, v0")
        A(f"v_lshlrev_b32 {v(t[7])}, 3, {v(t[6])}")
        A(f"buffer_load_dwordx2 {v(SL,2)}, {v(t[7])}, {s(sWS,4)}, {s(sSb)} offen sc1")

    def mainloop(isV, tag):
        q0 = ["st0"]*4 + ["st1"]*4; qx = list(q0)
        def need(q, tags):
            last = max(i for i, x in enumerate(q) if x in tags)
            return len(q) - 1 - last
        def wait(tags):
            n0, nx = need(q0, tags), need(qx, tags)
            if n0 == nx:
                A(f"s_waitcnt vmcnt({n0})")
            else:
                L1 = A.newlabel(f"{name}_{tag}_wa"); L2 = A.newlabel(f"{name}_{tag}_wb")
                A(f"s_cmp_eq_u32 {s(sWV)}, 0")
                A(f"s_cbranch_scc1 {L1}")
                A(f"s_waitcnt vmcnt({nx})")
                A(f"s_branch {L2}")
                A.label(L1)
                A(f"s_waitcnt vmcnt({n0})")
                A.label(L2)
        PP = int(os.environ.get("PP", 5)); PE = int(os.environ.get("PE", 9))
        def sync(st):
            tags = [f"st{st}"]
            if st == PE - 1: tags += ["poll"]
            wait(tags)
            if st == PE - 1:
                L = A.newlabel(f"{name}_{tag}_pe")
                A(f"s_cmp_eq_u32 {s(sWV)}, 0")
                A(f"s_cbranch_scc0 {L}")
                poll_eval()
                A(f"v_mov_b32 {v(t[6])}, {STX}")
                A(f"v_mov_b32 {v(t[7])}, {s(sOK)}")
                A(f"ds_write_b32 {v(t[6])}, {v(t[7])}")
                A("s_waitcnt lgkmcnt(0)")
                A.label(L)
            A("s_barrier")
            if st in (0, 5) or os.environ.get('P1_ALLST'): ST.stamp()
            dl = []
            if st + DIST <= 9 and not os.environ.get("NODMA"):
                dl = capture(A, dma, st + DIST); q0.extend([f"st{st+DIST}"]*4); qx.extend([f"st{st+DIST}"]*4)
            if st == PE - 1 or st == PP or st == 0:
                for y in dl: A(y)
                dl = []
            if st == PE - 1:
                A(f"v_mov_b32 {v(t[6])}, {STX}")
                A(f"ds_read_b32 {v(t[7])}, {v(t[6])}")
                A("s_waitcnt lgkmcnt(0)")
                A(f"v_readfirstlane_b32 {s(sOK)}, {v(t[7])}")
                stat_loads(); q0.extend(["sl"]); qx.extend(["sl"])
            if st == PP:
                L = A.newlabel(f"{name}_{tag}_fl")
                A(f"s_cmp_eq_u32 {s(sWV)}, 0")
                A(f"s_cbranch_scc0 {L}")
                poll_issue(); q0.append("poll")
                A.label(L)
            return dl
        def mfl(st, ks):
            b = ks % 2; out = []
            for ti in range(2):
                c = "0" if (st == 0 and ks == 0) else v(acc[ti], 16)
                if isV: out.append(f"v_mfma_f32_32x32x16_bf16 {v(acc[ti],16)}, {v(Xf[b][ti],4)}, {v(Wf[b],4)}, {c}")
                else:   out.append(f"v_mfma_f32_32x32x16_bf16 {v(acc[ti],16)}, {v(Wf[b],4)}, {v(Xf[b][ti],4)}, {c}")
            return out
        def csm(st, ks):
            b = ks % 2
            L = A.newlabel(f"{name}_{tag}_cm")
            A(f"s_cbranch_vccnz {L}")
            c = "0" if (st == 0 and ks == 0) else v(accC, 16)
            if isV: A(f"v_mfma_f32_32x32x16_bf16 {v(accC,16)}, {v(ONE4,4)}, {v(Wf[b],4)}, {c}")
            else:   A(f"v_mfma_f32_32x32x16_bf16 {v(accC,16)}, {v(Wf[b],4)}, {v(ONE4,4)}, {c}")
            A.label(L)
        def step(st, ks, fill):
            m = mfl(st, ks)
            h = (len(fill) + 1) // 2
            A(m[0])
            for y in fill[:h]: A(y)
            A(m[1])
            for y in fill[h:]: A(y)
            csm(st, ks)
        A(f"s_cmp_eq_u32 {s(sWR)}, 1")
        A(f"s_cselect_b64 vcc, -1, 0")
        sync(0)
        reads(0, 0)
        pend = []
        for st in range(10):
            for ks in range(4):
                A("s_waitcnt lgkmcnt(0)")
                if ks < 3:
                    fill = capture(A, reads, st, ks + 1)
                elif st < 9:
                    pend = sync(st + 1)
                    fill = capture(A, reads, st + 1, 0)
                else:
                    fill = []
                take = pend[:(len(pend) + 2) // 3] if ks != 3 else pend[:len(pend) // 4]
                while take and take[-1].startswith("s_cmp"): take = pend[:len(take) + 1]
                pend = pend[len(take):]
                if ks == 2: take += pend; pend = []
                fill = fill + take
                step(st, ks, fill)

    def stats_exchange(tag):
        Lok = A.newlabel(f"{name}_{tag}_ok"); Lsp = A.newlabel(f"{name}_{tag}_spin"); Lgot = A.newlabel(f"{name}_{tag}_got")
        A("s_waitcnt vmcnt(0)")
        A(f"s_cmp_eq_u32 {s(sOK)}, 1")
        if os.environ.get("P1_FORCE_SLOW"): A(f"s_cmp_eq_u32 {s(sOK)}, 7")
        A(f"s_cbranch_scc1 {Lok}")
        A(f"s_mov_b32 s48, 0")
        A.label(Lsp)
        poll_issue()
        A("s_waitcnt vmcnt(0)")
        poll_eval()
        A(f"s_cmp_eq_u32 {s(sOK)}, 1")
        A(f"s_cbranch_scc1 {Lgot}")
        A("s_sleep 2")
        A(f"s_add_u32 s48, s48, 1")
        A(f"s_cmp_lt_u32 s48, 0x40000")
        A(f"s_cbranch_scc1 {Lsp}")
        A(f"s_mov_b32 {s(sOK)}, 1")
        A.label(Lgot)
        stat_loads()
        A("s_waitcnt vmcnt(0)")
        A.label(Lok)
        Lw = A.newlabel(f"{name}_csw")
        A(f"s_lshl_b32 {s(sT0)}, {s(sWC)}, 12")
        A(f"v_lshl_add_u32 {v(t[1])}, {v(vLane)}, 4, {s(sT0)}")
        A(f"s_cmp_eq_u32 {s(sWR)}, 0")
        A(f"s_cbranch_scc0 {Lw}")
        for i in range(4): A(f"ds_write_b128 {v(t[1])}, {v(accC+4*i,4)} offset:{16384+i*1024}")
        A.label(Lw)
        Lc = A.newlabel(f"{name}_redc")
        A(f"s_cmp_ge_u32 {s(sWV)}, 2")
        A(f"s_cbranch_scc1 {Lc}")
        A(f"v_lshlrev_b32 {v(t[0])}, 3, v0")
        A(f"ds_write_b64 {v(t[0])}, {v(SL,2)} offset:10240")
        A.label(Lc)
        A("s_waitcnt lgkmcnt(0)")
        A("s_barrier")
        Lr = A.newlabel(f"{name}_csr")
        A(f"s_cmp_eq_u32 {s(sWR)}, 1")
        A(f"s_cbranch_scc0 {Lr}")
        for i in range(4): A(f"ds_read_b128 {v(accC+4*i,4)}, {v(t[1])} offset:{16384+i*1024}")
        A("s_waitcnt lgkmcnt(0)")
        A.label(Lr)

    LV = f"{name}_V"
    A(f"s_cmp_ge_u32 {s(sCG)}, 10")
    A(f"s_cbranch_scc1 {LV}")
    n0 = ST.n
    mainloop(False, "qk")
    ST.stamp()
    stats_exchange("qk")
    ST.stamp()
    P = accC
    M = Wf[0]
    A(f"s_lshl_b32 {s(sT0)}, {s(sWR)}, 6")
    A(f"v_add_u32 {v(t[0])}, {s(sT0)}, {v(vLi)}")
    A(f"v_lshlrev_b32 {v(t[0])}, 3, {v(t[0])}")
    A(f"ds_read_b64 {v(M,2)}, {v(t[0])} offset:10240")
    A(f"ds_read_b64 {v(M+2,2)}, {v(t[0])} offset:{10240+256}")
    A(f"s_cmp_ge_u32 {s(sCG)}, 5")
    A(f"s_cselect_b32 {s(sT0)}, {WS_KM:#x}, {WS_QM:#x}")
    A(f"s_cselect_b32 {s(sT1)}, {WS_KR-WS_QR:#x}, 0")
    A(f"s_cselect_b32 {s(sT2)}, 1.0, {f32bits(QSCALE):#x}")
    A(f"s_cselect_b32 {s(sT3)}, 5, 0")
    A(f"s_sub_u32 {s(sT3)}, {s(sCG)}, {s(sT3)}")
    A(f"s_lshl_b32 {s(sT3)}, {s(sT3)}, 2")
    A(f"s_add_u32 {s(sT3)}, {s(sT3)}, {s(sWC)}")
    A(f"s_lshl_b32 {s(sT3)}, {s(sT3)}, 3")
    A(f"s_add_u32 {s(sT1)}, {s(sT1)}, {WS_QR:#x}")
    sTT = 36
    A(f"s_lshl_b32 {s(sTT)}, {s(sRB)}, 2")
    A(f"s_lshl_b32 {s(37)}, {s(sWR)}, 1")
    A(f"s_add_u32 {s(sTT)}, {s(sTT)}, {s(37)}")
    vMb, vRb, vC0 = t[2], t[3], t[4]
    A(f"s_lshl_b32 {s(37)}, {s(sTT)}, 10")
    A(f"s_add_u32 {s(37)}, {s(37)}, {s(sT0)}")
    A(f"v_lshl_add_u32 {v(vMb)}, {v(vLane)}, 3, {s(37)}")
    A(f"s_lshl_b32 {s(37)}, {s(sTT)}, 8")
    A(f"s_add_u32 {s(37)}, {s(37)}, {s(sT1)}")
    A(f"v_lshl_add_u32 {v(vRb)}, {v(vLi)}, 3, {s(37)}")
    A(f"v_add_u32 {v(vC0)}, {s(sT3)}, {v(vHb)}")
    A("s_waitcnt lgkmcnt(0)")
    A(f"v_mul_f32 {v(M+1)}, {s(sT2)}, {v(M+1)}")
    A(f"v_mul_f32 {v(M+3)}, {s(sT2)}, {v(M+3)}")
    vH, vE, vA0 = t[5], t[6], t[7]
    vA1 = t[0]; vPk = M+4
    for g in range(4):
        A(f"v_add_u32 {v(vE)}, {2*g}, {v(vC0)}")
        A(f"v_mul_u32_u24 {v(vH)}, 205, {v(vE)}")
        A(f"v_lshrrev_b32 {v(vH)}, 10, {v(vH)}")
        A(f"v_mul_u32_u24 {v(vA0)}, 5, {v(vH)}")
        A(f"v_sub_u32 {v(vE)}, {v(vE)}, {v(vA0)}")
        A(f"v_lshl_add_u32 {v(vA0)}, {v(vH)}, 16, {v(vMb)}")
        A(f"v_lshrrev_b32 {v(t[1])}, 1, {v(vE)}")
        A(f"v_lshl_add_u32 {v(vA0)}, {v(t[1])}, 9, {v(vA0)}")
        A(f"v_lshl_add_u32 {v(vH)}, {v(vH)}, 14, {v(vRb)}")
        A(f"v_cmp_eq_u32 vcc, 4, {v(vE)}")
        A(f"v_add_u32 {v(vA1)}, 1024, {v(vA0)}")
        A(f"v_add_u32 {v(t[1])}, 256, {v(vH)}")
        A(f"v_cndmask_b32 {v(vA0)}, {v(vA0)}, {v(vH)}, vcc")
        A(f"v_cndmask_b32 {v(vA1)}, {v(vA1)}, {v(t[1])}, vcc")
        for ti in range(2):
            for r in range(4):
                x = acc[ti] + 4*g + r
                A(f"v_fma_f32 {v(x)}, -{v(M+2*ti)}, {v(P+4*g+r)}, {v(x)}")
            for r in range(4):
                x = acc[ti] + 4*g + r
                A(f"v_mul_f32 {v(x)}, {v(M+2*ti+1)}, {v(x)}")
            x = acc[ti] + 4*g
            A(f"v_cvt_pk_bf16_f32 {v(x)}, {v(x)}, {v(x+1)}")
            A(f"v_cvt_pk_bf16_f32 {v(x+1)}, {v(x+2)}, {v(x+3)}")
            A(f"buffer_store_dwordx2 {v(x,2)}, {v(vA0 if ti == 0 else vA1)}, {s(sWS,4)}, 0 offen {'sc1' if ONE else os.environ.get('ST1','')}")
    if ONE:
        A(f"s_branch {DONE}")
    else:
        ST.finish(sWV, t[0] + (t[0] % 2))
        A("s_endpgm")
    ST.n = n0
    A.label(LV)
    mainloop(True, "v")
    ST.stamp()
    stats_exchange("v")
    ST.stamp()
    A(f"s_lshl_b32 {s(sT0)}, {s(sWC)}, 5")
    A(f"v_add_u32 {v(t[0])}, {s(sT0)}, {v(vLi)}")
    A(f"v_mov_b32 {v(vCs)}, {v(accC)}")
    A(f"s_sub_u32 {s(sT1)}, {s(sCG)}, 10")
    A(f"s_lshl_b32 {s(sT1)}, {s(sT1)}, 7")
    A(f"v_add_u32 {v(t[0])}, {s(sT1)}, {v(t[0])}")
    A(f"v_mul_u32_u24 {v(t[2])}, 3277, {v(t[0])}")
    A(f"v_lshrrev_b32 {v(t[2])}, 16, {v(t[2])}")
    A(f"v_mul_u32_u24 {v(t[3])}, 20, {v(t[2])}")
    A(f"v_sub_u32 {v(t[0])}, {v(t[0])}, {v(t[3])}")
    A(f"v_mul_u32_u24 {v(t[2])}, {128*640}, {v(t[2])}")
    A(f"v_lshl_add_u32 {v(t[2])}, {v(t[0])}, 4, {v(t[2])}")
    A(f"v_mul_u32_u24 {v(t[3])}, 320, {v(vHb)}")
    A(f"v_add_u32 {v(t[2])}, {v(t[2])}, {v(t[3])}")
    A(f"s_lshl_b32 {s(sT0)}, {s(sRB)}, 2")
    A(f"s_lshl_b32 {s(sT1)}, {s(sWR)}, 1")
    A(f"s_add_u32 {s(sT0)}, {s(sT0)}, {s(sT1)}")
    A(f"s_mul_i32 {s(sT0)}, {s(sT0)}, 1280")
    A(f"s_add_u32 {s(sT0)}, {s(sT0)}, {WS_VT:#x}")
    A(f"v_add_u32 {v(t[2])}, {s(sT0)}, {v(t[2])}")
    A(f"s_lshl_b32 {s(sT0)}, {s(sWR)}, 9")
    A(f"v_lshl_add_u32 {v(t[4])}, {v(vHb)}, 5, {s(sT0)}")
    P = Xf[0][0]
    for ti in range(2):
        for gh in range(2):
            for gg in range(2):
                g = gh*2 + gg
                A(f"ds_read_b128 {v(P+8*gg,4)}, {v(t[4])} offset:{10240+ti*256+g*64}")
                A(f"ds_read_b128 {v(P+8*gg+4,4)}, {v(t[4])} offset:{10240+ti*256+g*64+16}")
            A("s_waitcnt lgkmcnt(0)")
            for gg in range(2):
                g = gh*2 + gg
                for r in range(4):
                    x = acc[ti] + 4*g + r
                    A(f"v_fma_f32 {v(x)}, -{v(P+8*gg+2*r)}, {v(vCs)}, {v(x)}")
                for r in range(4):
                    x = acc[ti] + 4*g + r
                    A(f"v_mul_f32 {v(x)}, {v(P+8*gg+2*r+1)}, {v(x)}")
            x = acc[ti] + 8*gh
            for i in range(4):
                A(f"v_cvt_pk_bf16_f32 {v(x+i)}, {v(x+2*i)}, {v(x+2*i+1)}")
            A(f"buffer_store_dwordx4 {v(x,4)}, {v(t[2])}, {s(sWS,4)}, 0 offen offset:{ti*1280+gh*640} {'sc1' if ONE else os.environ.get('ST1','')}")
    if ONE:
        A.label(DONE)
        A(f"s_mul_i32 {s(sT0)}, {s(sRB)}, 15")
        A(f"s_add_u32 {s(sT0)}, {s(sT0)}, {s(sCG)}")
        mg_set_pending(A, sT0)
        A(f"s_branch {name}_next")
    else:
        ST.finish(sWV, t[0] + (t[0] % 2))
        A.label(END)
        A("s_endpgm")
    A.label(LIDLE)
    A(f"v_lshrrev_b32 {v(t[0])}, 4, {v(vLane)}")
    A(f"s_lshl_b32 {s(sT0)}, {s(sRB)}, 7")
    A(f"s_lshl_b32 {s(sT1)}, {s(sWV)}, 4")
    A(f"s_add_u32 s47, {s(sT0)}, {s(sT1)}")
    A(f"v_add_u32 {v(t[0])}, s47, {v(t[0])}")
    A(f"v_mul_u32_u24 {v(t[0])}, 1280, {v(t[0])}")
    A(f"v_and_b32 {v(t[1])}, 15, {v(vLane)}")
    A(f"v_lshl_add_u32 {v(t[0])}, {v(t[1])}, 4, {v(t[0])}")
    for q_ in range(4):
        A(f"s_mov_b32 {s(sT0)}, {q_*4*1280}")
        for c_ in range(5):
            A(f"buffer_load_dwordx4 {v(LA+(q_*5+c_)*4,4)}, {v(t[0])}, {s(sX,4)}, {s(sT0)} offen offset:{c_*256}")
    A(f"v_mov_b32 {v(vOne)}, 0x3f803f80")
    SA = acc[0]
    for i in range(8): A(f"v_mov_b32 {v(SA+i)}, 0")
    for q_ in range(4):
        A(f"s_waitcnt vmcnt({15 - 5*q_})")
        for c_ in range(5):
            for j in range(4):
                x = LA + (q_*5+c_)*4 + j
                A(f"v_dot2c_f32_bf16 {v(SA+2*q_)}, {v(x)}, {v(vOne)}")
                A(f"v_dot2c_f32_bf16 {v(SA+2*q_+1)}, {v(x)}, {v(x)}")
    A("s_nop 2")
    for ror in (8, 4, 2, 1):
        for i in range(8): A(f"v_add_f32_dpp {v(SA+i)}, {v(SA+i)}, {v(SA+i)} row_ror:{ror} row_mask:0xf bank_mask:0xf")
    for q_ in range(4):
        m, q2 = SA + 2*q_, SA + 2*q_ + 1
        A(f"v_mul_f32 {v(m)}, {f32bits(1.0/D):#x}, {v(m)}")
        A(f"v_mul_f32 {v(q2)}, {f32bits(1.0/D):#x}, {v(q2)}")
        A(f"v_fma_f32 {v(q2)}, -{v(m)}, {v(m)}, {v(q2)}")
        A(f"v_max_f32 {v(q2)}, 0, {v(q2)}")
        A(f"v_add_f32 {v(q2)}, {f32bits(EPS):#x}, {v(q2)}")
        A(f"v_rsq_f32 {v(q2)}, {v(q2)}")
    A(f"v_lshrrev_b32 {v(t[0])}, 4, {v(vLane)}")
    A(f"v_lshlrev_b32 {v(t[0])}, 3, {v(t[0])}")
    A(f"s_lshl_b32 {s(sT0)}, s47, 3")
    A(f"s_add_u32 {s(sT0)}, {s(sT0)}, {WS_ST1:#x}")
    A(f"s_mov_b32 exec_lo, 0x00010001")
    A(f"s_mov_b32 exec_hi, 0x00010001")
    for q_ in range(4):
        A(f"buffer_store_dwordx2 {v(SA+2*q_,2)}, {v(t[0])}, {s(sWS,4)}, {s(sT0)} offen offset:{q_*32} sc1")
    A(f"s_mov_b64 exec, -1")
    A("s_waitcnt vmcnt(0)")
    A("s_barrier")
    Lq = A.newlabel(f"{name}_idl")
    A(f"s_cmp_eq_u32 {s(sWV)}, 0")
    A(f"s_cbranch_scc0 {Lq}")
    write_flag()
    A.label(Lq)
    if ONE:
        A.label(f"{name}_next")
        ST.stamp("end")
    else:
        A("s_endpgm")
    return A.text(), kernel_desc(name, R.hi), (256, 512, 131072 + 4096)
```

```python
import sys, importlib
from common import *
import p1
HEADER = open("sequential_preLN__softmax_full_mha__glu_gated_swiglu__prompt.s.ref").read().split("; Override launch")[0]
def build(kernels, path):
    out = [HEADER.rstrip()]
    for (name, text, desc, (g, b, lds)) in kernels:
        out.append(f"; @launch kernel={name} grid=({g},1,1) block=({b},1,1) lds={lds}")
    out.append('.amdgcn_target "amdgcn-amd-amdhsa--gfx950"')
    out.append(".text")
    for (name, text, desc, cfg) in kernels:
        out.append(text)
        out.append(f"{name}_CODE_END:")
    out.append('.section .rodata,"a"')
    for (name, text, desc, cfg) in kernels:
        out.append(desc)
    open(path, "w").write("\n".join(out) + "\n")
if __name__ == "__main__":
    ks = []
    def add(name, fn):
        t, d, c = fn(name); ks.append((name, t, d, c))
    which = sys.argv[2].split(",") if len(sys.argv) > 2 else ["p1","p2","p3","p4","p5"]
    for p in which:
        m = importlib.import_module(p)
        add(m.NAME if hasattr(m,"NAME") else f"{p}_kernel", getattr(m, f"gen_{p}"))
    if ONE:
        lds = max(k[3][2] for k in ks)
        text = ""
        for k in ks: text += k[1] + f"\n{k[0]}_CODE_END:\n"
        ks = [(KNAME, text, kernel_desc(KNAME, 256), (256, 512, lds))]
    elif MERGED:
        p1k = [k for k in ks if k[0] == "p1_kernel"]; rest = [k for k in ks if k[0] != "p1_kernel"]
        import re as _re
        vg = max(int(_re.search(r"next_free_vgpr (\d+)", k[2]).group(1)) for k in rest)
        lds = max(k[3][2] for k in rest)
        text = ""
        for k in rest: text += k[1] + f"\n{k[0]}_CODE_END:\n" if k is not rest[0] else k[1] + "\n"
        ks = p1k + [("p2_kernel", text, kernel_desc("p2_kernel", 256), (256, 512, lds))]
    build(ks, sys.argv[1])
```

```python
from asmlib import *
KA_X, KA_WQKV, KA_WO, KA_BX, KA_W1, KA_W3, KA_W2, KA_OUT, KA_DBG, KA_WS = [8*i for i in range(10)]
T = 2048; D = 640; H = 32; DH = 20; F = 1728
WS_QM = 0x000000
WS_QR = 0x200000
WS_KM = 0x280000
WS_KR = 0x480000
WS_VT = 0x500000
WS_OM = 0x780000
WS_OR = 0x980000
WS_H  = 0xA00000
WS_G  = 0xC80000
WS_A2 = 0x1340000
WS_W13F = 0x1400000
WS_W2F = 0x1840000
WS_WOF = 0x1A60000
WS_CS  = 0x1B30000
WS_ST2 = 0x1B40000
WS_ST1 = 0x1B80000
WS_CSP = 0x1B90000
WS_FLG2 = 0x1BC0000
WS_FLG3 = 0x1BC8000
WS_FLG4 = 0x1BD0000
WS_CNTRP = 0x1BD8000
WS_FLG1 = 0x1BE0000
WS_EPOCH = 0x1BE8000
WS_SIZE = 0x1C00000
SZ_X = T*D*2; SZ_WQKV = D*3*D*2; SZ_WO = D*D*2; SZ_W1 = D*F*2; SZ_W2 = F*D*2; SZ_OUT = T*D*2
QSCALE = (DH ** -0.5) * 1.4426950408889634
EPS = 1e-5

def srd(A, sreg, ptr_sreg, size):
    A(f"s_mov_b32 {s(sreg)}, {s(ptr_sreg)}")
    A(f"s_and_b32 {s(sreg+1)}, {s(ptr_sreg+1)}, 0xffff")
    A(f"s_mov_b32 {s(sreg+2)}, {size:#x}")
    A(f"s_mov_b32 {s(sreg+3)}, 0x20000")

import os
STAMP = os.environ.get("STAMP", "0") == "1"
WS_STAMP = 0x1F00000
class Stamper:
    def __init__(self, A, wsptr, base=60):
        self.A = A; self.n = 0; self.base = base; self.ws = wsptr
    names = []
    def stamp(self, tag=None):
        if not STAMP: return
        if MERGED and getattr(self, "mg", False):
            k = len(Stamper.names); Stamper.names.append(f"{self.mg}:{tag or self.n}"); self.n += 1
            if k == 0:
                self.A("s_memrealtime s[92:93]"); self.A("s_waitcnt lgkmcnt(0)"); self.A("v_writelane_b32 v255, s92, 62")
            self.A("s_memtime s[92:93]")
            self.A("s_waitcnt lgkmcnt(0)")
            self.A(f"v_writelane_b32 v255, s92, {k}")
            return
        if self.n == 0: self.A("s_memrealtime s[90:91]")
        self.A(f"s_memtime {s(self.base+2*self.n,2)}")
        self.A("s_waitcnt lgkmcnt(0)")
        self.n += 1
    def finish(self, sWV, vtmp, koff=0):
        if not STAMP: return
        A = self.A
        if MERGED and getattr(self, "mg", False):
            self.stamp("end")
            if self.mg == "p5":
                L = f"mstamp_skip"
                A("s_memrealtime s[92:93]"); A("s_waitcnt lgkmcnt(0) vmcnt(0)"); A("v_writelane_b32 v255, s92, 63")
                A(f"s_cmp_eq_u32 {s(sWV)}, 0")
                A(f"s_cbranch_scc0 {L}")
                A(f"s_lshl_b32 s58, s2, 8")
                A(f"s_add_u32 s58, s58, {WS_STAMP + 0x40000:#x}")
                A(f"s_add_u32 s58, {s(self.ws)}, s58")
                A(f"s_addc_u32 s59, {s(self.ws+1)}, 0")
                A(f"v_and_b32 {v(vtmp)}, 63, v0")
                A(f"v_lshlrev_b32 {v(vtmp)}, 2, {v(vtmp)}")
                A(f"global_store_dword {v(vtmp)}, v255, s[58:59]")
                A.label(L)
                open("mstamp_names.txt", "w").write("\n".join(Stamper.names))
            return
        self.stamp()
        A("s_memrealtime s[92:93]")
        Stamper.cnt = getattr(Stamper, "cnt", 0) + 1
        L = f"stamp_skip_k{koff}_{Stamper.cnt}"
        A("s_waitcnt lgkmcnt(0) vmcnt(0)")
        A(f"s_cmp_eq_u32 {s(sWV)}, 0")
        A(f"s_cbranch_scc0 {L}")
        A(f"s_lshl_b32 s58, s2, 6")
        A(f"s_add_u32 s58, s58, {WS_STAMP + koff*0x10000:#x}")
        A(f"s_add_u32 s58, {s(self.ws)}, s58")
        A(f"s_addc_u32 s59, {s(self.ws+1)}, 0")
        A(f"v_mov_b32 {v(vtmp+1)}, 0")
        for i in range(self.n):
            if i == 0:
                A(f"v_mov_b32 {v(vtmp)}, {s(self.base)}")
            else:
                A(f"s_sub_u32 {s(self.base+2*i)}, {s(self.base+2*i)}, {s(self.base)}")
                A(f"v_mov_b32 {v(vtmp)}, {s(self.base+2*i)}")
            A(f"global_store_dword {v(vtmp+1)}, {v(vtmp)}, s[58:59] offset:{4*i}")
            A("s_nop 1")
        A("s_sub_u32 s92, s92, s90")
        A(f"v_mov_b32 {v(vtmp)}, s92")
        A(f"global_store_dword {v(vtmp+1)}, {v(vtmp)}, s[58:59] offset:60")
        A(f"v_mov_b32 {v(vtmp)}, s90")
        A(f"global_store_dword {v(vtmp+1)}, {v(vtmp)}, s[58:59] offset:56")
        A.label(L)


def rot_init(A, sPh, sIdx, nst, t0, t1):
    A(f"s_lshr_b32 {s(t0)}, s2, 3")
    A(f"s_and_b32 {s(t1)}, {s(t0)}, 7")
    A(f"s_lshl_b32 {s(t1)}, {s(t1)}, 2")
    A(f"s_lshr_b32 {s(t0)}, {s(t0)}, 3")
    A(f"s_mul_i32 {s(t0)}, {s(t0)}, 9")
    A(f"s_add_u32 {s(t0)}, {s(t0)}, {s(t1)}")
    A(f"s_and_b32 {s(t0)}, {s(t0)}, 31")
    A(f"s_mul_i32 {s(t0)}, {s(t0)}, {nst}")
    A(f"s_lshr_b32 {s(sPh)}, {s(t0)}, 5")
def rot_next(A, sPh, nst):
    A(f"s_add_u32 {s(sPh)}, {s(sPh)}, 1")
    A(f"s_cmp_eq_u32 {s(sPh)}, {nst}")
    A(f"s_cselect_b32 {s(sPh)}, 0, {s(sPh)}")


def touch_loop(A, name, items, sWS, vdst, scnt, stmp, maxfly=2):
    for k, (creg, cval, vaddr, srdreg, soff, mask) in enumerate(items):
        L = A.newlabel(f"{name}_t")
        if creg is not None:
            A(f"s_cmp_eq_u32 {s(creg)}, {cval}")
            A(f"s_cbranch_scc0 {L}")
        A(f"s_waitcnt vmcnt({maxfly-1})")
        A(f"s_mov_b32 {s(stmp)}, {soff:#x}")
        if mask: A(f"s_mov_b64 exec, {mask}")
        A(f"buffer_load_dword {v(vdst)}, {v(vaddr)}, {s(srdreg,4)}, {s(stmp)} offen")
        if mask: A(f"s_mov_b64 exec, -1")
        A.label(L)


def sched_seq(N, S, Ld=1):
    G = N // S
    assert G * S == N
    mode = os.environ.get("SCHED", "0")
    if mode == "1":
        return [(i, None) for i in range(S)] + [(S*g, i) for g in range(1, G) for i in range(S)]
    if mode == "2":
        rest = [(S*g, i) for g in range(G) for i in range(S)]
        return [(i, None) for i in range(S)] + [(S*g, i) for g in range(1, G) for i in range(S)] if False else [(0, None)] + [(0, i) for i in range(1, S)] and _seq2(N, S)
    seq = [(S*g, 0) for g in range(min(Ld, G))]
    for g in range(G):
        if g + Ld < G: seq.append((S*(g+Ld), 0))
        for i in range(1, S): seq.append((S*g, i))
    assert len(seq) == N
    return seq
def _seq2(N, S):
    return [(i, None) for i in range(S)] + [(S*g, i) for g in range(1, N//S) for i in range(S)]
def sched_init(A, sU, S, t0, t1, local_mask=None):
    A(f"s_lshr_b32 {s(t0)}, s2, 3")
    if local_mask is not None:
        A(f"s_and_b32 {s(t0)}, {s(t0)}, {local_mask}")
    else:
        A(f"s_and_b32 {s(t1)}, {s(t0)}, 7")
        A(f"s_lshr_b32 {s(t0)}, {s(t0)}, 3")
        A(f"s_add_u32 {s(t0)}, {s(t0)}, {s(t1)}")
    if S & (S-1) == 0:
        A(f"s_and_b32 {s(sU)}, {s(t0)}, {S-1}")
    else:
        assert S == 3 or S == 5
        m = {3: 86, 5: 52}[S]
        A(f"s_mul_i32 {s(t1)}, {s(t0)}, {m}")
        A(f"s_lshr_b32 {s(t1)}, {s(t1)}, 8")
        A(f"s_mul_i32 {s(t1)}, {s(t1)}, {S}")
        A(f"s_sub_u32 {s(sU)}, {s(t0)}, {s(t1)}")
def sched_phys(A, sPh, sU, S, base, i):
    if i is None:
        A(f"s_mov_b32 {s(sPh)}, {base}")
    elif i == 0:
        A(f"s_add_u32 {s(sPh)}, {s(sU)}, {base}")
    else:
        A(f"s_add_u32 {s(sPh)}, {s(sU)}, {i}")
        A(f"s_cmp_ge_u32 {s(sPh)}, {S}")
        A(f"s_cselect_b32 s100, {S}, 0")
        A(f"s_sub_u32 {s(sPh)}, {s(sPh)}, s100")
        if base: A(f"s_add_u32 {s(sPh)}, {s(sPh)}, {base}")


def code_touch(A, name, targets, sWV, vLane, vtmp, spair, stmp):
    if os.environ.get("NO_CTOUCH") or os.environ.get("ONLY12") and name.startswith("p2"): return
    L = A.newlabel(f"{name}_ct"); P = A.newlabel(f"{name}_pc")
    A(f"s_cmp_eq_u32 {s(sWV)}, 7")
    A(f"s_cbranch_scc0 {L}")
    first, last = targets
    A(f"s_getpc_b64 {s(spair,2)}")
    A.label(P)
    A(f"s_add_u32 {s(spair)}, {s(spair)}, {first}-{P}")
    A(f"s_addc_u32 {s(spair+1)}, {s(spair+1)}, 0")
    A(f"s_lshr_b32 {s(stmp)}, s2, 3")
    A(f"s_lshl_b32 {s(stmp)}, {s(stmp)}, 13")
    A(f"s_cmp_ge_u32 {s(stmp)}, {last}-{first}")
    A(f"s_cbranch_scc1 {L}")
    A(f"v_lshl_add_u32 {v(vtmp)}, {v(vLane)}, 7, {s(stmp)}")
    A(f"v_min_u32 {v(vtmp)}, {last}-{first}-4, {v(vtmp)}")
    A(f"global_load_dword {v(vtmp)}, {v(vtmp)}, {s(spair,2)}")
    A.label(L)


KNAME = "sequential_preLN__softmax_full_mha__glu_gated_swiglu__prompt_kernel"
ONE = os.environ.get("ONE", "0") == "1"
MERGED = os.environ.get("MERGED", "0") == "1" or ONE
SC = " sc1" if MERGED else ""
LOCAL = MERGED and os.environ.get("LOCAL", "0") == "1"
SCS = "" if LOCAL else SC
EARLY = MERGED and os.environ.get("EARLY", "0") == "1"

def mg_publish(A, name, sWS, sWV, sId, base, vt0, vt1, stmp, ST=None):
    L = A.newlabel(f"{name}_pub")
    if ST and os.environ.get("MG_DIAG"): ST.stamp()
    A("s_waitcnt vmcnt(0)")
    if ST and os.environ.get("MG_DIAG"): ST.stamp()
    if barrier: A("s_barrier")
    A(f"s_cmp_eq_u32 {s(sWV)}, 0")
    A(f"s_cbranch_scc0 {L}")
    A(f"s_lshl_b32 {s(stmp)}, {s(sId)}, 7")
    A(f"s_add_u32 {s(stmp)}, {s(stmp)}, {base:#x}")
    A(f"v_mov_b32 {v(vt0)}, 0")
    A(f"v_mov_b32 {v(vt1)}, 1")
    A(f"s_mov_b64 exec, 1")
    A(f"buffer_store_dword {v(vt1)}, {v(vt0)}, {s(sWS,4)}, {s(stmp)} offen sc1")
    A(f"s_mov_b64 exec, -1")
    A.label(L)

def mg_wait(A, name, sWS, sWV, vAddr, vExp, vVal, mask, scnt, ST=None, hi="0", barrier=True, vAddr2=None, vVal2=None):
    L = A.newlabel(f"{name}_wd"); Lp = A.newlabel(f"{name}_wp")
    if ST and os.environ.get("MG_DIAG"): ST.stamp()
    A(f"s_cmp_eq_u32 {s(sWV)}, 0")
    A(f"s_cbranch_scc0 {L}")
    A(f"s_mov_b32 {s(scnt)}, 0")
    A(f"s_mov_b32 exec_lo, {mask}")
    A(f"s_mov_b32 exec_hi, {hi}")
    A.label(Lp)
    A(f"buffer_load_dword {v(vVal)}, {v(vAddr)}, {s(sWS,4)}, 0 offen sc1")
    if vAddr2 is not None: A(f"buffer_load_dword {v(vVal2)}, {v(vAddr2)}, {s(sWS,4)}, 0 offen sc1")
    A("s_waitcnt vmcnt(0)")
    A(f"v_cmp_eq_u32 vcc, {v(vVal)}, {v(vExp)}")
    if vAddr2 is not None:
        A(f"v_cmp_eq_u32 s[96:97], {v(vVal2)}, {v(vExp)}")
        A(f"s_and_b64 vcc, vcc, s[96:97]")
    A(f"s_cmp_eq_u64 vcc, exec")
    A(f"s_cbranch_scc1 {L}_ok")
    A("s_sleep 1")
    A(f"s_add_u32 {s(scnt)}, {s(scnt)}, 1")
    A(f"s_cmp_lt_u32 {s(scnt)}, 0x100000")
    A(f"s_cbranch_scc1 {Lp}")
    A.label(f"{L}_ok")
    A(f"s_mov_b64 exec, -1")
    A.label(L)
    if ST and os.environ.get("MG_DIAG"): ST.stamp()
    if barrier: A("s_barrier")


S_PID, S_PVAL = 94, 95
S_T = 101
FLAGVAL = "s101" if ONE else "1"
S_DB = 88
DBG_T, DBG_CNT, DBG_ROW = 0, 8, 16
def mg_set_pending(A, sId):
    A(f"s_mov_b32 {s(S_PID)}, {s(sId)}")
    A(f"s_mov_b32 {s(S_PVAL)}, 1")
def mg_publish_pending(A, name, sWS, sWV, base, nafter, vt0, vt1, stmp, ST=None):
    L = A.newlabel(f"{name}_pub")
    if ST and os.environ.get("MG_DIAG"): ST.stamp("pre-drain")
    A(f"s_waitcnt vmcnt({nafter})")
    if ST and os.environ.get("MG_DIAG"): ST.stamp("drained")
    A("s_barrier")
    A(f"s_cmp_eq_u32 {s(sWV)}, 0")
    A(f"s_cbranch_scc0 {L}")
    A(f"s_cmp_eq_u32 {s(S_PVAL)}, 1")
    A(f"s_cbranch_scc0 {L}")
    A(f"s_lshl_b32 {s(stmp)}, {s(S_PID)}, 7")
    A(f"s_add_u32 {s(stmp)}, {s(stmp)}, {base:#x}")
    A(f"v_mov_b32 {v(vt0)}, 0")
    A(f"v_mov_b32 {v(vt1)}, {FLAGVAL}")
    A(f"s_mov_b64 exec, 1")
    A(f"buffer_store_dword {v(vt1)}, {v(vt0)}, {s(sWS,4)}, {s(stmp)} offen{SCS}")
    A(f"s_mov_b64 exec, -1")
    A.label(L)
    A(f"s_mov_b32 {s(S_PVAL)}, 0")

class VQ:
    def __init__(self): self.q = []
    def add(self, tag, n=1): self.q += [tag] * n
    def after(self, *tags):
        last = max(i for i, x in enumerate(self.q) if x in tags)
        return len(self.q) - 1 - last


def early_w35(which, sWS, sWV):
    NS = 10 if which == 3 else 27
    n = 13 if which == 3 else 15
    base = WS_WOF if which == 3 else WS_W2F
    ngc = ["s_lshr_b32 s96, s2, 5"] if LOCAL else ["s_and_b32 s96, s2, 1", "s_lshl_b32 s96, s96, 2", "s_lshr_b32 s97, s2, 6", "s_add_u32 s96, s96, s97"]
    setup = ngc + [
             f"s_mul_i32 s96, s96, {NS*10240}", f"s_lshl_b32 s97, {s(sWV)}, 10", "s_add_u32 s96, s96, s97",
             f"s_add_u32 s96, s96, {base:#x}", "v_and_b32 v253, 63, v0", "v_lshlrev_b32 v253, 4, v253"]
    loads = [[f"s_add_u32 m0, s97, {i*8192}", f"s_add_u32 s98, s96, {i*8192}",
              f"buffer_load_dwordx4 v253, {s(sWS,4)}, s98 offen sc1 lds"] for i in range(n)]
    return setup, loads

def early_w4(sWS, sWV, nst, SLOT):
    if LOCAL:
        cgc = ["s_lshr_b32 s96, s2, 4", "s_cmp_ge_u32 s96, 14", "s_cselect_b32 s99, 1, 0"]
    else:
        cgc = ["s_and_b32 s96, s2, 3", "s_lshr_b32 s97, s2, 6",
             "s_cmp_lt_u32 s96, 2", "s_cselect_b32 s98, 4, 3",
             "s_cmp_ge_u32 s97, s98", "s_cselect_b32 s99, 1, 0",
             "s_lshl_b32 s98, s96, 2", "s_cmp_eq_u32 s96, 3", "s_cselect_b32 s98, 11, s98",
             "s_add_u32 s96, s98, s97"]
    setup = cgc + [
             "s_lshl_b32 s96, s96, 2", f"s_lshr_b32 s97, {s(sWV)}, 1", "s_add_u32 s96, s96, s97", "s_mul_i32 s96, s96, 40",
             f"s_and_b32 s97, {s(sWV)}, 1", "s_add_u32 s96, s96, s97", "s_lshl_b32 s96, s96, 11", f"s_add_u32 s96, s96, {WS_W13F:#x}",
             "s_cmp_eq_u32 s99, 1", "s_cselect_b32 s96, 0x7ff00000, s96",
             f"s_lshl_b32 s97, {s(sWV)}, 11", "v_and_b32 v253, 63, v0", "v_lshlrev_b32 v253, 4, v253"]
    loads = [[f"s_add_u32 m0, s97, {st*SLOT + 8192 + m_*1024}", f"s_add_u32 s98, s96, {st*4096 + m_*1024}",
              f"buffer_load_dwordx4 v253, {s(sWS,4)}, s98 offen sc1 lds"] for st in range(nst) for m_ in range(2)]
    return setup, loads

def capture(A, fn, *args):
    n0 = len(A.lines); fn(*args); out = [x.strip() for x in A.lines[n0:]]; del A.lines[n0:]; return out
def weave_groups(A, body, groups):
    n = len(groups)
    if n == 0:
        for x in body: A(x)
        return
    step = max(1, len(body) // (n + 1))
    k = 0
    for i, x in enumerate(body):
        A(x)
        if k < n and (i + 1) % step == 0:
            for y in groups[k]: A(y)
            k += 1
    for g in groups[k:]:
        for y in g: A(y)


def need_tag(A, name, vt):
    L = A.newlabel(f"{name}_tg"); Lp = A.newlabel(f"{name}_tgp")
    A(f"s_cmp_lg_u32 {s(S_T)}, 0")
    A(f"s_cbranch_scc1 {L}")
    A(f"s_mov_b32 s99, 0")
    A.label(Lp)
    A(f"v_mov_b32 {v(vt)}, {DBG_T}")
    A(f"buffer_load_dword {v(vt)}, {v(vt)}, {s(S_DB,4)}, 0 offen sc1")
    A("s_waitcnt vmcnt(0)")
    A(f"v_readfirstlane_b32 {s(S_T)}, {v(vt)}")
    A(f"s_add_u32 s99, s99, 1")
    A(f"s_cmp_ge_u32 s99, 0x100000")
    A(f"s_cbranch_scc1 {L}")
    A(f"s_cmp_eq_u32 {s(S_T)}, 0")
    A(f"s_cbranch_scc1 {Lp}")
    A.label(L)
```
